```python
import torch

def _softmax(x, axis=-1):
    return torch.softmax(x, dim=axis)
def _gelu(x):
    return torch.nn.functional.gelu(x, approximate="tanh")
def _silu(x):
    return torch.nn.functional.silu(x)
def _sigmoid(x):
    return torch.sigmoid(x)
def _layernorm(x, axis=-1, eps=1e-5):
    m = x.mean(dim=axis, keepdim=True)
    v = x.var(dim=axis, keepdim=True, unbiased=False)
    return (x - m) / torch.sqrt(v + eps)
def _scatter_add(tgt, idx, src, axis=0):
    return tgt.clone().index_add_(axis, idx, src)
def _segment_sum(src, seg, n):
    out = torch.zeros((n,) + src.shape[1:], dtype=src.dtype)
    return out.index_add_(0, seg, src)
def _pad(x, pw):
    flat = tuple(v for pair in reversed(pw) for v in pair)
    return torch.nn.functional.pad(x, flat)

kernel_name = 'parallel_sum__spectral_gfnet__glu_gated_geglu__prompt'

def setup_inputs():

    _w = (lambda a: (lambda t: t.to(torch.bfloat16) if t.is_floating_point() else t)(torch.as_tensor(a)))
    def _A_setup():
        B, S, D = 1, 2048, 576
        Df = D // 2 + 1
        return {
            "x": _w((lambda *s: torch.randn(*s, dtype=torch.bfloat16) * 0.05)(B, S, D)),
            "w_r": _w((lambda *s: torch.randn(*s, dtype=torch.bfloat16) * 0.8)(S, Df) * 0.02),
            "w_i": _w((lambda *s: torch.randn(*s, dtype=torch.bfloat16) * 0.8)(S, Df) * 0.02),
        }
    _A_in = _A_setup()

    def _B_setup():
        B, S, Dm, Df = 1, 2048, 576, 4608
        return {
            "x": _w((lambda *s: torch.randn(*s, dtype=torch.bfloat16) * 0.05)(B, S, Dm)),
            "w_gate": _w((lambda *s: torch.randn(*s, dtype=torch.bfloat16) * 0.4)(Dm, Df) * (Dm ** -0.5)),
            "w_up": _w((lambda *s: torch.randn(*s, dtype=torch.bfloat16) * 0.4)(Dm, Df) * (Dm ** -0.5)),
            "w_down": _w((lambda *s: torch.randn(*s, dtype=torch.bfloat16) * 0.4)(Df, Dm) * (Df ** -0.5)),
        }
    _B_in = _B_setup()

    return {
        "A_x": _A_in["x"],
        "A_w_r": _A_in["w_r"],
        "A_w_i": _A_in["w_i"],
        "B_x": _B_in["x"],
        "B_w_gate": _B_in["w_gate"],
        "B_w_up": _B_in["w_up"],
        "B_w_down": _B_in["w_down"],
    }

def reference(A_x, A_w_r, A_w_i, B_x, B_w_gate, B_w_up, B_w_down):
    def _A_ref(x, w_r, w_i):
        B, S, D = x.shape
        X = (lambda x, axes=(-2,-1): torch.fft.rfft2(x.float(), dim=axes))(x, axes=(-2, -1))
        W = w_r + 1j * w_i
        X = X * W
        y = (lambda x, s, axes=(-2,-1): torch.fft.irfft2(x, s=s, dim=axes).to(torch.bfloat16))(X, (S, D), axes=(-2, -1))
        return y

    def _B_ref(x, w_gate, w_up, w_down):
        g = torch.einsum("bsd,df->bsf", x, w_gate)
        u = torch.einsum("bsd,df->bsf", x, w_up)
        h = _gelu(g) * u
        return torch.einsum("bsf,fd->bsd", h, w_down)

    x = A_x
    xn = _layernorm(x, axis=-1)
    return x + _A_ref(xn, A_w_r, A_w_i) + _B_ref(xn, B_w_gate, B_w_up, B_w_down)
```

```python
from common import *
import common
def a2_body(first_wg):
    SW=20; SC=21; ST=22; ST2=23; SZR=24; SZI=25
    Z=8; WR=40; TL=72; PK=136; TB=184; TM=248; D32=TB; TW1=TB+24; D64=TB; TW2=Z
    common.stamp(0); common.stamp(5, True)
    e(f"s_load_dwordx2 s[6:7], s[0:1], {K_WS}")
    e("v_lshrrev_b32 v1, 6, v0")
    e("v_and_b32 v0, 63, v0")
    e(f"s_sub_u32 s{SC}, s2, {first_wg}")
    e(f"v_readfirstlane_b32 s{SW}, v1")
    e("v_lshrrev_b32 v2, 5, v0")
    e("v_and_b32 v3, 31, v0")
    e(f"s_lshl_b32 s{SC}, s{SC}, 2")
    e(f"s_add_u32 s{SC}, s{SC}, s{SW}")
    e(f"s_lshl_b32 s{SZR}, s{SC}, 13")
    e(f"s_add_u32 s{SZI}, s{SZR}, 4096")
    e(f"s_cmp_eq_u32 s{SC}, 288"); e(f"s_cselect_b32 s{SZR}, 4096, s{SZR}"); e(f"s_cselect_b32 s{SZI}, 0, s{SZI}"); e(f"s_cselect_b32 s26, 0x40000000, 0")
    e(f"s_cmp_eq_u32 s{SC}, 0"); e(f"s_cselect_b32 s26, 0x40000000, s26")
    e("v_lshlrev_b32 v4, 6, v3")
    e("v_lshl_add_u32 v4, v2, 4, v4")
    e("v_lshlrev_b32 v5, 4, v0")
    e("v_add_u32 v6, s26, v4")
    e("s_waitcnt lgkmcnt(0)")
    srd(8, 6, OFF['PT'], SZ['PT']); srd(12, 6, OFF['DT'], SZ['DT']); srd(16, 6, OFF['WT'], SZ['WT']); srd(28, 6, OFF['QT'], SZ['QT'])
    e(f"s_mul_i32 s{ST2}, s{SW}, {11*1024}")
    for i in range(11):
        e(f"s_add_u32 m0, s{ST2}, {i*1024}")
        e(f"s_add_u32 s{ST}, s{ST2}, {i*1024}")
        e(f"buffer_load_dwordx4 v5, s[12:15], s{ST} offen lds")
    e(f"s_cmp_ge_u32 s{SC}, 289")
    e("s_cbranch_scc1 La2_skip")
    for ri in range(2):
        for mb in range(2):
            for ks in range(2):
                e(f"buffer_load_dwordx4 {vr(Z+((ri*2+mb)*2+ks)*4,4)}, {'v4' if ri==0 else 'v6'}, s[8:11], s{SZR if ri==0 else SZI} offen offset:{mb*2048+ks*32}")
    e(f"s_lshl_b32 s{ST2}, s{SC}, 13")
    for i in range(8):
        if i % 4 == 0: e(f"s_add_u32 s{ST}, s{ST2}, {(i//4)*4096}")
        e(f"buffer_load_dwordx4 {vr(WR+4*i,4)}, v5, s[16:19], s{ST} offen offset:{(i%4)*1024}")
    e("s_waitcnt vmcnt(16)")
    e("s_barrier")
    e("s_branch La2_go")
    lab("La2_skip")
    e("s_waitcnt vmcnt(0)")
    e("s_barrier")
    e("s_endpgm")
    lab("La2_go")
    def ldt(dst, idx):
        e(f"ds_read_b128 {vr(dst,4)}, v5 offset:{idx*1024}")
    for i in range(6): ldt(D32+4*i, i)
    for i in range(8): ldt(TW1+4*i, DT_TW1+i)
    C32, S32, NS32 = D32, D32+8, D32+16
    C64 = lambda m, k: D64 + (m*4+k)*4
    S64 = lambda m, k: D64 + 32 + (m*4+k)*4
    z = lambda ri, mb, ks: Z+((ri*2+mb)*2+ks)*4
    tile = lambda ri, m: TL + (ri*2+m)*16
    def gemm(dst, terms):
        first = True
        for (a, b) in terms:
            mfma(dst, a, b, "0" if first else None); first = False
    e("s_waitcnt vmcnt(8) lgkmcnt(8)")
    common.stamp(1)
    for mb in range(2):
        gemm(tile(0,mb), [(z(0,mb,k), C32+4*k) for k in range(2)] + [(z(1,mb,k), S32+4*k) for k in range(2)])
        gemm(tile(1,mb), [(z(0,mb,k), NS32+4*k) for k in range(2)] + [(z(1,mb,k), C32+4*k) for k in range(2)])
    P0, P1, P2 = PK, PK+16, PK+32
    def cmul(tab, sign, hi_re, negre):
        for m in range(2):
            for p in range(8):
                R_, I_ = tile(0,m)+2*p, tile(1,m)+2*p
                w = tab + m*16 + 2*p
                c2, s2, t, u = TM, TM+2, TM+4, TM+6
                e(f"v_lshlrev_b32 v{c2}, 16, v{w}"); e(f"v_lshlrev_b32 v{c2+1}, 16, v{w+1}")
                e(f"v_and_b32 v{s2}, 0xffff0000, v{w}"); e(f"v_and_b32 v{s2+1}, 0xffff0000, v{w+1}")
                e(f"v_pk_mul_f32 {vr(t,2)}, {vr(R_,2)}, {vr(c2,2)}")
                e(f"v_pk_mul_f32 {vr(u,2)}, {vr(I_,2)}, {vr(c2,2)}")
                n1 = " neg_lo:[1,0,0] neg_hi:[1,0,0]"
                e(f"v_pk_fma_f32 {vr(t,2)}, {vr(I_,2)}, {vr(s2,2)}, {vr(t,2)}" + (n1 if sign > 0 else ""))
                e(f"v_pk_fma_f32 {vr(u,2)}, {vr(R_,2)}, {vr(s2,2)}, {vr(u,2)}" + (n1 if sign < 0 else ""))
                e(f"v_cvt_pk_bf16_f32 v{P0+8*m+p}, v{t}, v{t+1}")
                e(f"v_cvt_pk_bf16_f32 v{P1+8*m+p}, v{u}, v{u+1}")
        src = P0 if negre else P1
        for i in range(16): e(f"v_xor_b32 v{P2+i}, 0x80008000, v{src+i}")
    for i in range(8): ldt(TW2+4*i, DT_TW2+i)
    e("s_nop 7")
    e("s_waitcnt lgkmcnt(8)")
    cmul(TW1, -1, None, True)
    for i in range(16): ldt(D64+4*i, DT_C64+i)
    e("s_waitcnt lgkmcnt(0)")
    common.stamp(2)
    for m in range(2):
        gemm(tile(0,m), [(C64(m,k), P0+4*k) for k in range(4)] + [(S64(m,k), P1+4*k) for k in range(4)])
        gemm(tile(1,m), [(C64(m,k), P1+4*k) for k in range(4)] + [(S64(m,k), P2+4*k) for k in range(4)])
    e("s_nop 7"); e("s_nop 7")
    e("s_waitcnt vmcnt(0)")
    cmul(WR, +1, None, False)
    for i in range(4): ldt(WR+4*i, DT_C32I+i)
    for n in range(2):
        gemm(tile(0,n), [(P0+4*k, C64(n,k)) for k in range(4)] + [(P2+4*k, S64(n,k)) for k in range(4)])
        gemm(tile(1,n), [(P0+4*k, S64(n,k)) for k in range(4)] + [(P1+4*k, C64(n,k)) for k in range(4)])
    e("s_nop 7"); e("s_nop 7")
    common.stamp(3)
    cmul(TW2, +1, None, False)
    e("s_waitcnt lgkmcnt(0)")
    CI, SI = WR, WR+8
    for n in range(2):
        gemm(tile(0,n), [(CI+4*k, P0+8*n+4*k) for k in range(2)] + [(SI+4*k, P2+8*n+4*k) for k in range(2)])
        gemm(tile(1,n), [(SI+4*k, P0+8*n+4*k) for k in range(2)] + [(CI+4*k, P1+8*n+4*k) for k in range(2)])
    e("v_lshlrev_b32 v4, 6, v3")
    e("v_lshl_add_u32 v4, v2, 3, v4")
    e("v_add_u32 v6, s26, v4")
    e("s_nop 7"); e("s_nop 5")
    for ri in range(2):
        for n in range(2):
            d = P0 + (ri*2+n)*8
            for p in range(8): e(f"v_cvt_pk_bf16_f32 v{d+p}, v{tile(ri,n)+2*p}, v{tile(ri,n)+2*p+1}")
            for q in range(4):
                e(f"buffer_store_dwordx2 {vr(d+2*q,2)}, {'v4' if ri==0 else 'v6'}, s[28:31], s{SZR if ri==0 else SZI} offen offset:{n*2048+16*q}")
    e("s_waitcnt vmcnt(0)")
    common.stamp(4); common.stamp(6, True); common.stamp_out(7, SW, 6, 0); e("s_waitcnt vmcnt(0)")
    lab("La2_end")
    e("s_endpgm")
```

```python
import sys
sys.path.insert(0, 'gen')
from common import *
import common, gemm, prep, a2, fin
def build(path, only=None, F1=(8,32,4,4,0), G2=(4,32,4,8,1)):
    L.clear()
    hdr = open('cdna_kernels/'+KN+'.s.ref').read().split('; Override')[0]
    descs = []; launches = []
    header("prep_kernel"); v, lds, n = prep.prep_kernel(); descs.append(desc("prep_kernel", v)); launches.append(("prep_kernel", n, 384, lds))
    header("ffn1_kernel"); e("s_cmp_ge_u32 s2, 256"); e("s_cbranch_scc1 Lf1_end")
    v, lds = gemm.gemm_kernel("ffn1", *F1); lab("Lf1_end"); e("s_endpgm"); descs.append(desc("ffn1_kernel", v)); launches.append(("ffn1_kernel", 256, 512, lds))
    header("g2_kernel"); e("s_cmp_ge_u32 s2, 256"); e("s_cbranch_scc1 Lg2_a2")
    v, lds = gemm.gemm_kernel("gemm2", *G2); lab("Lg2_a2"); a2.a2_body(256); descs.append(desc("g2_kernel", 256)); launches.append(("g2_kernel", 256+73, 256, lds))
    header("fin_kernel"); v, lds, n = fin.fin_kernel(); descs.append(desc("fin_kernel", v)); launches.append(("fin_kernel", n, 384, lds))
    s = hdr
    for (nm, g, b, l) in launches:
        if only is None or nm in only:
            s += f"; @launch kernel={nm} grid=({g},1,1) block=({b},1,1) lds={l}\n"
    s += '.amdgcn_target "amdgcn-amd-amdhsa--gfx950"\n.text\n' + "\n".join(L) + '\n.section .rodata,"a"\n.p2align 6\n' + "\n.p2align 6\n".join(descs)
    open(path, 'w').write(s)
if __name__ == "__main__":
    build('cdna_kernels/'+KN+'.s')
```

```python
KN = "parallel_sum__spectral_gfnet__glu_gated_geglu__prompt"
L = []
def e(s): L.append("    " + s)
def lab(s): L.append(s + ":")
def c(s): L.append("    ; " + s)

XN   = 0
PT   = XN + 64*36*1024
QT   = PT + 288*2*4096
FINV = QT + 288*2*4096
WT   = FINV + 18*36*1024
DT   = WT + 289*8192
H    = (DT + 44*1024 + 4095)//4096*4096
PART = H + 64*288*1024
WSEND = PART + 8*64*18*2048
SZ = dict(XN=64*36*1024, PT=288*2*4096, QT=288*2*4096, FINV=18*36*1024, WT=289*8192, DT=44*1024,
          H=64*288*1024, PART=8*64*18*2048)
OFF = dict(XN=XN, PT=PT, QT=QT, FINV=FINV, WT=WT, DT=DT, H=H, PART=PART)
DT_C32, DT_S32, DT_NS32 = 0, 2, 4
DT_C32I, DT_S32I = 6, 8
DT_C64, DT_S64 = 12, 20
DT_TW1, DT_TW2 = 28, 36
A_X, A_WR, A_WI, B_X, B_WG, B_WU, B_WD, K_OUT, K_DBG, K_WS = [8*i for i in range(10)]

def srd(d, base, off, size):
    if off:
        e(f"s_add_u32 s{d}, s{base}, {off}")
        e(f"s_addc_u32 s{d+1}, s{base+1}, 0")
    else:
        e(f"s_mov_b32 s{d}, s{base}")
        e(f"s_mov_b32 s{d+1}, s{base+1}")
    e(f"s_mov_b32 s{d+2}, {size}")
    e(f"s_mov_b32 s{d+3}, 0x00020000")

def vr(a, n=1):
    return f"v{a}" if n == 1 else f"v[{a}:{a+n-1}]"

def mfma(d, a, b, cz=None):
    cc = vr(d,16) if cz is None else cz
    e(f"v_mfma_f32_32x32x16_bf16 {vr(d,16)}, {vr(a,4)}, {vr(b,4)}, {cc}")

def header(name):
    L.append(f".globl {name}\n.p2align 8\n.type {name},@function\n{name}:")

def desc(name, vgpr, sgpr=96):
    v = (vgpr + 7)//8*8
    return (f".amdhsa_kernel {name}\n  .amdhsa_next_free_vgpr {v}\n  .amdhsa_next_free_sgpr {sgpr}\n"
            f"  .amdhsa_accum_offset {(v+3)//4*4}\n  .amdhsa_group_segment_fixed_size 0\n  .amdhsa_kernarg_size 80\n"
            f"  .amdhsa_user_sgpr_count 2\n  .amdhsa_user_sgpr_kernarg_segment_ptr 1\n"
            f"  .amdhsa_system_sgpr_workgroup_id_x 1\n.end_amdhsa_kernel\n")

def divmagic(dst, src, d, tmp_s, maxv=1<<16):
    sh = 20
    m = (( 1 << sh) + d - 1)//d
    for x in range(0, maxv):
        if (x*m) >> sh != x//d:
            raise ValueError("bad magic")
    assert maxv*m < (1 << 32) and m < (1<<24)
    e(f"s_mov_b32 s{tmp_s}, {m}")
    e(f"v_mul_u32_u24 v{dst}, s{tmp_s}, v{src}")
    e(f"v_lshrrev_b32 v{dst}, {sh}, v{dst}")

STAMP = 0
STAMP_OFF = 200 << 20
def stamp(i, real=False):
    if not STAMP: return
    e(f"{'s_memrealtime' if real else 's_memtime'} s[{70+2*i}:{71+2*i}]")
    e("s_waitcnt lgkmcnt(0)")
def stamp_out(n, swave, wsbase, vt):
    if not STAMP: return
    e(f"s_add_u32 s66, s{wsbase}, {STAMP_OFF}"); e(f"s_addc_u32 s67, s{wsbase+1}, 0")
    e(f"s_lshl_b32 s68, s2, 3"); e(f"s_add_u32 s68, s68, s{swave}"); e(f"s_lshl_b32 s68, s68, 7")
    e(f"v_mov_b32 v{vt}, s68")
    for i in range(n):
        e(f"v_mov_b32 v{vt+2}, s{70+2*i}"); e(f"v_mov_b32 v{vt+3}, s{71+2*i}")
        e(f"global_store_dwordx2 v{vt}, v[{vt+2}:{vt+3}], s[66:67] offset:{8*i}")
        e("s_nop 1")
```

```python
from common import *
import common
def fin_kernel():
    SW=20; ST=21; ST2=22; ST3=23; STB=24; SDB=25
    FI=8; PA=152; XR=216; ACC=224; BF=240
    e("s_cmp_ge_u32 s2, 192")
    e("s_cbranch_scc1 Lfin_end")
    common.stamp(0); common.stamp(5, True)
    e(f"s_load_dwordx2 s[4:5], s[0:1], {A_X}")
    e(f"s_load_dwordx2 s[6:7], s[0:1], {K_WS}")
    e(f"s_load_dwordx2 s[8:9], s[0:1], {K_OUT}")
    e("v_lshrrev_b32 v1, 6, v0")
    e("v_and_b32 v0, 63, v0")
    e("s_nop 0")
    e(f"v_readfirstlane_b32 s{SW}, v1")
    e("v_lshrrev_b32 v2, 5, v0")
    e("v_and_b32 v3, 31, v0")
    e(f"s_and_b32 s{ST}, s2, 31")
    e(f"s_lshr_b32 s{ST2}, s2, 5")
    e(f"s_lshl_b32 s{STB}, s{ST}, 1")
    e(f"s_and_b32 s{ST3}, s{SW}, 1")
    e(f"s_add_u32 s{STB}, s{STB}, s{ST3}")
    e(f"s_mul_i32 s{SDB}, s{ST2}, 3")
    e(f"s_lshr_b32 s{ST3}, s{SW}, 1")
    e(f"s_add_u32 s{SDB}, s{SDB}, s{ST3}")
    e("s_waitcnt lgkmcnt(0)")
    srd(12, 6, OFF['QT'], SZ['QT']); srd(16, 6, OFF['FINV'], SZ['FINV']); srd(28, 6, OFF['PART'], SZ['PART'])
    srd(32, 4, 0, 2048*1152); srd(36, 8, 0, 2048*1152)
    e("v_lshrrev_b32 v4, 3, v0"); e("v_lshlrev_b32 v4, 12, v4")
    e("v_and_b32 v5, 7, v0"); e("v_lshl_add_u32 v4, v5, 4, v4")
    e(f"s_lshl_b32 s{ST}, s{ST}, 7")
    e(f"s_mul_i32 s{ST2}, s{SW}, {12*8*4096}")
    e(f"s_add_u32 s{ST}, s{ST}, s{ST2}")
    e(f"s_mul_i32 s{ST2}, s{SW}, {12*1024}")
    for i in range(12):
        e(f"s_add_u32 m0, s{ST2}, {i*1024}")
        e(f"s_add_u32 s{ST3}, s{ST}, {i*8*4096}")
        e(f"buffer_load_dwordx4 v4, s[12:15], s{ST3} offen lds")
    e("v_lshlrev_b32 v5, 4, v0")
    e(f"s_mul_i32 s{ST}, s{SDB}, {36*1024}")
    for ks in range(36):
        if ks % 4 == 0 and ks: e(f"s_add_u32 s{ST}, s{ST}, 4096")
        e(f"buffer_load_dwordx4 {vr(FI+4*ks,4)}, v5, s[16:19], s{ST} offen offset:{(ks%4)*1024}")
    e(f"s_mul_i32 s{ST}, s{STB}, 18"); e(f"s_add_u32 s{ST}, s{ST}, s{SDB}"); e(f"s_lshl_b32 s{ST}, s{ST}, 11")
    for sp in range(8):
        if sp: e(f"s_add_u32 s{ST}, s{ST}, {64*18*2048}")
        e(f"buffer_load_dwordx4 {vr(PA+8*sp,4)}, v5, s[28:31], s{ST} offen")
        e(f"buffer_load_dwordx4 {vr(PA+8*sp+4,4)}, v5, s[28:31], s{ST} offen offset:1024")
    e("v_lshlrev_b32 v6, 6, v3"); e(f"v_add_u32 v6, s{STB}, v6"); e("v_mul_u32_u24 v6, 1152, v6")
    e("v_lshl_add_u32 v6, v2, 3, v6")
    e(f"s_lshl_b32 s{ST2}, s{SDB}, 6")
    for q in range(4): e(f"buffer_load_dwordx2 {vr(XR+2*q,2)}, v6, s[32:35], s{ST2} offen offset:{16*q}")
    e("v_bfe_u32 v7, v0, 2, 2"); e("v_lshl_add_u32 v7, v2, 3, v7"); e("v_lshlrev_b32 v7, 7, v7")
    e("v_bfe_u32 v1, v0, 4, 1"); e("v_lshl_add_u32 v7, v1, 5, v7")
    e("v_and_b32 v1, 3, v0"); e("v_lshl_add_u32 v7, v1, 3, v7")
    e(f"s_and_b32 s{ST3}, s{SW}, 1"); e(f"s_lshl_b32 s{ST3}, s{ST3}, 6"); e(f"v_add_u32 v7, s{ST3}, v7")
    e("v_add_u32 v1, 0x8000, v7")
    common.stamp(1)
    e(f"s_waitcnt vmcnt({36+16+4})")
    e("s_barrier")
    common.stamp(2)
    def rd(ks):
        a = BF + 4*(ks % 4)
        o = ks*16*128
        v = "v7" if o < 32768 else "v1"
        o = o if o < 32768 else o - 32768
        e(f"ds_read_b64_tr_b16 {vr(a,2)}, {v} offset:{o}")
        e(f"ds_read_b64_tr_b16 {vr(a+2,2)}, {v} offset:{o+4*128}")
    for ks in range(3): rd(ks)
    for ks in range(36):
        out = min(35, ks+2) - ks
        e(f"s_waitcnt vmcnt({35-ks+16+4}) lgkmcnt({2*out})")
        mfma(ACC, FI+4*ks, BF+4*(ks % 4), "0" if ks == 0 else None)
        if ks + 3 < 36: rd(ks+3)
    common.stamp(3)
    S = FI
    e("s_waitcnt vmcnt(4)")
    for p in range(8):
        e(f"v_lshlrev_b32 v{S+2*p}, 16, v{PA+p}"); e(f"v_and_b32 v{S+2*p+1}, 0xffff0000, v{PA+p}")
    for sp in range(1, 8):
        for p in range(8):
            t = S + 16 + (p % 2)*2
            e(f"v_lshlrev_b32 v{t}, 16, v{PA+8*sp+p}"); e(f"v_and_b32 v{t+1}, 0xffff0000, v{PA+8*sp+p}")
            e(f"v_add_f32 v{S+2*p}, v{S+2*p}, v{t}"); e(f"v_add_f32 v{S+2*p+1}, v{S+2*p+1}, v{t+1}")
    e("s_waitcnt vmcnt(0)")
    for p in range(8):
        t = S + 16 + (p % 2)*2
        e(f"v_lshlrev_b32 v{t}, 16, v{XR+p}"); e(f"v_and_b32 v{t+1}, 0xffff0000, v{XR+p}")
        e(f"v_add_f32 v{S+2*p}, v{S+2*p}, v{t}"); e(f"v_add_f32 v{S+2*p+1}, v{S+2*p+1}, v{t+1}")
    for r in range(16): e(f"v_add_f32 v{S+r}, v{S+r}, v{ACC+r}")
    for p in range(8): e(f"v_cvt_pk_bf16_f32 v{XR+p}, v{S+2*p}, v{S+2*p+1}")
    for q in range(4): e(f"buffer_store_dwordx2 {vr(XR+2*q,2)}, v6, s[36:39], s{ST2} offen offset:{16*q}")
    e("s_waitcnt vmcnt(0)")
    common.stamp(4); common.stamp(6, True); common.stamp_out(7, SW, 6, 0); e("s_waitcnt vmcnt(0)")
    lab("Lfin_end")
    e("s_endpgm")
    return 256, 72*1024, 192
```

```python
from common import *
import common
import math
REPEAT = 0
NO_DMA = 0
NO_LDS = 0
NO_BAR = 0
NO_W = 0
NO_B = 0
def gemm_kernel(mode, NW, BK, NSLOT, NB, PF=0):
    F1 = mode == "ffn1"
    KS = BK//16
    NCH = 576//BK
    FPC = 9*KS
    if F1:
        REG = BK*288
        STR = (2*REG + 128 + 255)//256*256
        NDMA = 2*REG//1024
        upr = 18
    else:
        REG = BK*576
        STR = REG
        NDMA = REG//1024
        upr = 36
    T = (NDMA + NW - 1)//NW
    GS = (0 if NO_W else T) + (0 if NO_B else KS)
    ACC = 0; AR = 144; BR = AR + 24; VA = BR + NB*KS*4
    VO = VA + NSLOT
    VB = VO + T
    VT = VB + 1
    SR = 20
    SM = SR + 4*T
    SW = SM + T
    SO = SW + 1
    SB = SW + 2
    ST = SW + 3; ST2 = SW + 4; ST3 = SW+5
    assert ST3 < 66, ST3
    common.stamp(0); common.stamp(5, True)
    e(f"s_load_dwordx2 s[4:5], s[0:1], {B_WG if F1 else B_WD}")
    if F1: e(f"s_load_dwordx2 s[6:7], s[0:1], {B_WU}")
    e(f"s_load_dwordx2 s[8:9], s[0:1], {K_WS}")
    e(f"v_lshrrev_b32 v{VT}, 6, v0")
    e(f"v_and_b32 v0, 63, v0")
    e("s_nop 0")
    e(f"v_readfirstlane_b32 s{SW}, v{VT}")
    e(f"s_and_b32 s{ST}, s2, 7")
    e(f"s_lshr_b32 s{ST2}, s2, 3")
    if F1:
        e(f"s_lshr_b32 s{ST3}, s{ST2}, 3")
        e(f"s_lshl_b32 s{ST}, s{ST}, 2")
        e(f"s_add_u32 s{ST}, s{ST}, s{ST3}")
        e(f"s_and_b32 s{ST2}, s{ST2}, 7")
        e(f"s_lshl_b32 s{ST2}, s{ST2}, 3")
        e(f"s_add_u32 s{ST2}, s{ST2}, s{SW}")
        e(f"s_mul_i32 s{SO}, s{ST}, 288")
        e(f"s_mul_i32 s{SB}, s{ST2}, {36*1024}")
        e(f"s_mul_i32 s{ST3}, s{ST2}, 288")
        e(f"s_mul_i32 s{ST}, s{ST}, 9")
        e(f"s_add_u32 s{ST3}, s{ST3}, s{ST}")
        e(f"s_lshl_b32 s3, s{ST3}, 10")
    else:
        e(f"s_and_b32 s{ST3}, s{ST2}, 1")
        e(f"s_lshr_b32 s{ST2}, s{ST2}, 1")
        e(f"s_lshl_b32 s{ST2}, s{ST2}, 2")
        e(f"s_add_u32 s{ST2}, s{ST2}, s{SW}")
        e(f"s_mul_i32 s{SO}, s{ST}, {576*1152}")
        e(f"s_mul_i32 s3, s{ST3}, 576")
        e(f"s_add_u32 s{SO}, s{SO}, s3")
        e(f"s_mul_i32 s{SB}, s{ST2}, 288")
        e(f"s_mul_i32 s3, s{ST}, 36")
        e(f"s_add_u32 s{SB}, s{SB}, s3")
        e(f"s_lshl_b32 s{SB}, s{SB}, 10")
        e(f"s_lshl_b32 s3, s{ST}, 6")
        e(f"s_add_u32 s3, s3, s{ST2}")
        e(f"s_mul_i32 s3, s3, 18")
        e(f"s_mul_i32 s{ST3}, s{ST3}, 9")
        e(f"s_add_u32 s3, s3, s{ST3}")
        e(f"s_lshl_b32 s3, s3, 11")
    for t in range(T):
        e(f"s_add_u32 s{ST}, s{SW}, {NW*t}")
        if F1:
            half = NDMA//2
            e(f"s_cmp_ge_u32 s{ST}, {half}")
            e(f"s_cselect_b32 s{ST2}, {half}, 0")
            e(f"s_cselect_b32 s{ST3}, {REG+128}, 0")
            e(f"s_sub_u32 s{ST2}, s{ST}, s{ST2}")
        else:
            e(f"s_mov_b32 s{ST2}, s{ST}")
            e(f"s_mov_b32 s{ST3}, 0")
        e(f"s_lshl_b32 s{SM+t}, s{ST2}, 10")
        e(f"s_add_u32 s{SM+t}, s{SM+t}, s{ST3}")
        e(f"s_lshl_b32 s{ST2}, s{ST2}, 6")
        e(f"v_add_u32 v{VT}, s{ST2}, v0")
        divmagic(VT+1, VT, upr, ST2, maxv=4096)
        e(f"v_mul_u32_u24 v{VT+2}, {upr}, v{VT+1}")
        e(f"v_sub_u32 v{VT}, v{VT}, v{VT+2}")
        e(f"v_lshlrev_b32 v{VT}, 4, v{VT}")
        if F1:
            hb = BK//2
            e(f"v_lshrrev_b32 v{VT+2}, {int(math.log2(hb))}, v{VT+1}")
            e(f"v_and_b32 v{VT+1}, {hb-1}, v{VT+1}")
            e(f"v_mul_u32_u24 v{VT+2}, 288, v{VT+2}")
            e(f"v_add_u32 v{VT+1}, v{VT+1}, v{VT+2}")
            e(f"s_mov_b32 s{ST2}, 9216")
            e(f"v_mul_lo_u32 v{VT+1}, s{ST2}, v{VT+1}")
        else:
            e(f"v_mul_u32_u24 v{VT+1}, 1152, v{VT+1}")
        e(f"v_add_u32 v{VO+t}, v{VT}, v{VT+1}")
        if NW*t + NW - 1 >= NDMA:
            e(f"s_cmp_ge_u32 s{ST}, {NDMA}")
            e(f"s_cselect_b32 s{ST2}, 0x40000000, 0")
            assert (2*NSLOT-1)*STR + 1024 < 262144
            e(f"s_cselect_b32 s{SM+t}, {NSLOT*STR}, s{SM+t}")
            e(f"v_add_u32 v{VO+t}, s{ST2}, v{VO+t}")
    e(f"v_lshlrev_b32 v{VB}, 4, v0")
    e(f"v_lshrrev_b32 v{VT}, 5, v0")
    e(f"v_bfe_u32 v{VT+1}, v0, 4, 1")
    e(f"v_bfe_u32 v{VT+2}, v0, 2, 2")
    e(f"v_and_b32 v{VT+3}, 3, v0")
    e(f"v_lshlrev_b32 v{VT+3}, 3, v{VT+3}")
    if F1:
        e(f"v_mul_u32_u24 v{VT}, {BK//2}, v{VT}")
        e(f"v_add_u32 v{VT}, v{VT}, v{VT+2}")
        e(f"v_mul_u32_u24 v{VT}, 288, v{VT}")
        e(f"v_mul_u32_u24 v{VT+1}, {REG+128}, v{VT+1}")
    else:
        e(f"v_lshlrev_b32 v{VT}, 2, v{VT}")
        e(f"v_add_u32 v{VT}, v{VT}, v{VT+2}")
        e(f"v_mul_u32_u24 v{VT}, 576, v{VT}")
        e(f"v_lshlrev_b32 v{VT+1}, 5, v{VT+1}")
    e(f"v_add3_u32 v{VA}, v{VT}, v{VT+1}, v{VT+3}")
    for s in range(1, NSLOT):
        e(f"v_add_u32 v{VA+s}, {s*STR}, v{VA}")
    e("s_waitcnt lgkmcnt(0)")
    wsz = 576*9216 if F1 else 4608*1152
    for t in range(T):
        d = SR + 4*t
        if F1:
            e(f"s_add_u32 s{ST}, s{SW}, {NW*t}")
            e(f"s_cmp_ge_u32 s{ST}, {NDMA//2}")
            e(f"s_cselect_b32 s{d}, s6, s4")
            e(f"s_cselect_b32 s{d+1}, s7, s5")
        else:
            e(f"s_mov_b32 s{d}, s4"); e(f"s_mov_b32 s{d+1}, s5")
        e(f"s_mov_b32 s{d+2}, {wsz}"); e(f"s_mov_b32 s{d+3}, 0x00020000")
    srd(12, 8, OFF['XN' if F1 else 'H'], SZ['XN' if F1 else 'H'])
    srd(16, 8, OFF['H' if F1 else 'PART'], SZ['H' if F1 else 'PART'])
    rowb = 9216 if F1 else 1152
    chrows = BK//2 if F1 else BK
    issued = []
    def issueW(k):
        if NO_DMA or NO_W or k >= NCH: return
        e(f"s_add_u32 s{ST}, s{SO}, {k*chrows*rowb}")
        for t in range(T):
            e(f"s_add_u32 m0, s{SM+t}, {(k%NSLOT)*STR}")
            if t == 0: e("s_nop 0")
            else: e(f"s_nop 0")
            e(f"buffer_load_dwordx4 v{VO+t}, s[{SR+4*t}:{SR+4*t+3}], s{ST} offen lds")
            issued.append(("W", k))
    def issueB(k):
        if NO_DMA or NO_B or k >= NCH: return
        e(f"s_add_u32 s{ST2}, s{SB}, {k*KS*1024}")
        for q in range(KS):
            e(f"buffer_load_dwordx4 {vr(BR+((k%NB)*KS+q)*4,4)}, v{VB}, s[12:15], s{ST2} offen offset:{q*1024}")
            issued.append(("B", k))
    def reads(g):
        if NO_LDS: return
        cch = g//FPC; w = g % FPC; kq = w//9; nb = w % 9
        a = AR + 4*(g % 6)
        if F1:
            o1 = (8*kq)*288 + nb*32; o2 = o1 + 4*288
        else:
            o1 = (16*kq)*576 + nb*64; o2 = o1 + 8*576
        e(f"ds_read_b64_tr_b16 {vr(a,2)}, v{VA+cch%NSLOT} offset:{o1}")
        e(f"ds_read_b64_tr_b16 {vr(a+2,2)}, v{VA+cch%NSLOT} offset:{o2}")
    def sync(cc):
        need = [i for i, x in enumerate(issued) if x[1] <= cc+1 and x[0] != "X"]
        allowed = len(issued) - 1 - max(need) if need else len(issued)
        e(f"s_waitcnt vmcnt({min(allowed, 63)})")
        if not NO_BAR: e("s_barrier")
        issueW(cc + NSLOT - 1)
    if REPEAT:
        e(f's_mov_b32 s95, {REPEAT}'); lab(f'Lrep_{mode}')
    issueW(0); issueB(0)
    if PF:
        e(f"s_lshr_b32 s{ST3}, s2, 3"); e(f"s_mul_i32 s{ST3}, s{ST3}, {18*1152}")
        e(f"s_and_b32 s{ST2}, s2, 7"); e(f"s_mul_i32 s{ST2}, s{ST2}, {576*1152}"); e(f"s_add_u32 s{ST3}, s{ST3}, s{ST2}")
        e(f"s_mul_i32 s{ST2}, s{SW}, {5184}"); e(f"s_add_u32 s{ST3}, s{ST3}, s{ST2}")
        e(f"v_lshlrev_b32 v{VT+10}, 7, v0")
        e(f"v_min_u32 v{VT+10}, 5180, v{VT+10}")
        e(f"buffer_load_dword v{VT+11}, v{VT+10}, s[{SR}:{SR+3}], s{ST3} offen")
        issued.append(("X", 0))
    nextB = [min(2, NB-1)]
    for k in range(1, max(NSLOT-2, nextB[0])):
        if k < NSLOT-2: issueW(k)
        if k < nextB[0]: issueB(k)
    for r in range(144): e(f"v_mov_b32 v{ACC+r}, 0")
    common.stamp(1)
    sync(-1)
    common.stamp(2)
    NF = NCH*FPC
    D = 5
    for g in range(D): reads(g)
    for g in range(NF):
        cch = g//FPC; w = g % FPC; kq = w//9; nb = w % 9
        out = min(NF-1, g+D-1) - g
        e(f"s_waitcnt lgkmcnt({2*out})")
        b = BR + ((cch % NB)*KS + kq)*4
        mfma(ACC + 16*nb, AR + 4*(g % 6), b)
        if w == 0:
            tgt = min(cch + NB - 1, 2*cch + 3)
            while nextB[0] <= tgt:
                issueB(nextB[0]); nextB[0] += 1
        g2 = g + D
        if g2 < NF:
            if g2 % FPC == 0: sync(g2//FPC - 1)
            reads(g2)
    if REPEAT:
        e("s_waitcnt vmcnt(0) lgkmcnt(0)"); e("s_barrier"); e("s_sub_u32 s95, s95, 1"); e("s_cmp_lg_u32 s95, 0"); e(f"s_cbranch_scc1 Lrep_{mode}")
    e("s_nop 7"); e("s_nop 7")
    common.stamp(3)
    if F1:
        C1 = -2*0.7978845608028654*1.4426950408889634
        C2 = C1*0.044715
        import struct
        f2u = lambda x: struct.unpack("<I", struct.pack("<f", x))[0]
        e(f"s_mov_b32 s{ST}, {hex(f2u(C1))}")
        e(f"s_mov_b32 s{ST2}, {hex(f2u(C2))}")
        e(f"v_mov_b32 v{VT+8}, s{ST}")
        t0 = AR
        for nb in range(9):
            a = ACC + 16*nb
            tm = t0 + (nb % 2)*16
            for r in range(8): e(f"v_mul_f32 v{tm+r}, v{a+r}, v{a+r}")
            for r in range(8): e(f"v_fma_f32 v{tm+r}, v{tm+r}, s{ST2}, v{VT+8}")
            for r in range(8): e(f"v_mul_f32 v{tm+r}, v{tm+r}, v{a+r}")
            for r in range(8): e(f"v_exp_f32 v{tm+r}, v{tm+r}")
            for r in range(8): e(f"v_mul_f32 v{a+r}, v{a+r}, v{a+8+r}")
            for r in range(8): e(f"v_add_f32 v{tm+r}, 1.0, v{tm+r}")
            for r in range(8): e(f"v_rcp_f32 v{tm+r}, v{tm+r}")
            e("s_nop 0")
            for r in range(8): e(f"v_mul_f32 v{a+r}, v{a+r}, v{tm+r}")
            for r in range(4): e(f"v_cvt_pk_bf16_f32 v{tm+8+r}, v{a+2*r}, v{a+2*r+1}")
            e(f"s_add_u32 s{ST3}, s3, {nb*1024}")
            e(f"buffer_store_dwordx4 {vr(tm+8,4)}, v{VB}, s[16:19], s{ST3} offen")
    else:
        for nb in range(9):
            a = ACC + 16*nb
            tm = AR + (nb % 3)*8
            for r in range(8): e(f"v_cvt_pk_bf16_f32 v{tm+r}, v{a+2*r}, v{a+2*r+1}")
            e(f"s_add_u32 s{ST3}, s3, {nb*2048}")
            e(f"buffer_store_dwordx4 {vr(tm,4)}, v{VB}, s[16:19], s{ST3} offen")
            e(f"buffer_store_dwordx4 {vr(tm+4,4)}, v{VB}, s[16:19], s{ST3} offen offset:1024")
    e("s_waitcnt vmcnt(0)")
    common.stamp(4); common.stamp(6, True)
    common.stamp_out(7, SW, 8, 0 if True else VT)
    e("s_waitcnt vmcnt(0)")
    e("s_endpgm")
    lds = NSLOT*STR
    return VT+12, lds
```

```python
from common import *
import common
import struct
def f2u(x): return hex(struct.unpack("<I", struct.pack("<f", x))[0])
NA, NB_, NC = 192, 86, 116
def prep_kernel():
    SW=20; ST=21; ST2=22; ST3=23; ST4=24; ST5=25
    e(f"s_cmp_ge_u32 s2, {NA+NB_+NC}")
    e("s_cbranch_scc1 Lprep_end")
    common.stamp(0); common.stamp(5, True)
    e(f"s_load_dwordx2 s[4:5], s[0:1], {A_X}")
    e(f"s_load_dwordx4 s[8:11], s[0:1], {A_WR}")
    e(f"s_load_dwordx2 s[6:7], s[0:1], {K_WS}")
    e("v_lshrrev_b32 v1, 6, v0")
    e("v_and_b32 v0, 63, v0")
    e("s_nop 0")
    e(f"v_readfirstlane_b32 s{SW}, v1")
    e("v_lshrrev_b32 v2, 5, v0")
    e("v_and_b32 v3, 31, v0")
    e(f"s_cmp_ge_u32 s2, {NA+NB_}")
    e("s_cbranch_scc1 Lprep_C")
    e(f"s_cmp_ge_u32 s2, {NA}")
    e("s_cbranch_scc1 Lprep_B")
    XF=8; XU=32; FF=80; ACC=224; T0=240
    e(f"s_mul_i32 s{ST}, s2, 43691")
    e(f"s_lshr_b32 s{ST}, s{ST}, 17")
    e(f"s_mul_i32 s{ST2}, s{ST}, 3")
    e(f"s_sub_u32 s{ST2}, s2, s{ST2}")
    e(f"s_mul_i32 s{ST3}, s{ST2}, 6")
    e(f"s_add_u32 s{ST3}, s{ST3}, s{SW}")
    e("v_lshlrev_b32 v4, 6, v3")
    e(f"v_add_u32 v4, s{ST}, v4")
    e("v_mul_u32_u24 v4, 1152, v4")
    e("v_mul_u32_u24 v5, 576, v2")
    e("v_add_u32 v4, v4, v5")
    e(f"s_mul_i32 s{ST4}, s{SW}, 96")
    e("s_waitcnt lgkmcnt(0)")
    srd(12, 4, 0, 2048*1152)
    for i in range(6):
        e(f"buffer_load_dwordx4 {vr(XF+4*i,4)}, v4, s[12:15], s{ST4} offen offset:{16*i}")
    e("v_and_b32 v5, 15, v0")
    e(f"s_lshl_b32 s{ST4}, s{ST3}, 4")
    e(f"v_add_u32 v5, s{ST4}, v5")
    e("v_bfe_u32 v6, v0, 4, 1")
    e("v_cvt_f32_u32 v7, v6")
    e("v_mul_f32 v7, 0.25, v7") if False else None
    e(f"v_mul_f32 v7, {f2u(0.25)}, v7")
    e("v_cmp_eq_u32 vcc, 0, v5")
    e("v_cmp_eq_u32 s[26:27], 1, v6")
    e("s_nop 1")
    e("s_and_b64 vcc, vcc, s[26:27]")
    e("v_mov_b32 v6, 288")
    e("s_nop 1")
    e("v_cndmask_b32 v5, v5, v6, vcc")
    e("v_cndmask_b32 v7, v7, 0, vcc") if False else None
    e("v_mov_b32 v6, 0")
    e("v_cndmask_b32 v7, v7, v6, vcc")
    e(f"s_mov_b32 s{ST4}, {f2u(1.0/576)}")
    e("v_cvt_f32_u32 v6, v5")
    e(f"v_mul_f32 v6, s{ST4}, v6")
    e("v_cos_f32 v6, v6")
    e("s_nop 0")
    e("v_add_f32 v6, v6, v6")
    e("v_mul_u32_u24 v1, 288, v2")
    R = T0
    for m in range(9):
        for z in range(2):
            e(f"v_add_u32 v{R+z}, {32*m+z}, v1")
            e(f"v_mul_u32_u24 v{R+z}, v{R+z}, v5")
            e(f"v_cvt_f32_u32 v{R+z}, v{R+z}")
            e(f"v_mul_f32 v{R+z}, s{ST4}, v{R+z}")
            e(f"v_fract_f32 v{R+z}, v{R+z}")
            e(f"v_add_f32 v{R+z}, v{R+z}, v7")
            e(f"v_cos_f32 v{R+z}, v{R+z}")
        e("s_nop 0")
        for p in range(16):
            a, b = R + (2*p) % 4, R + (2*p+1) % 4
            if p > 0:
                pa, pb = R + (2*p-2) % 4, R + (2*p-1) % 4
                e(f"v_fma_f32 v{a}, v6, v{pb}, -v{pa}")
                e(f"v_fma_f32 v{b}, v6, v{a}, -v{pb}")
            e(f"v_cvt_pk_bf16_f32 v{FF+16*m+p}, v{a}, v{b}")
    common.stamp(1)
    e("s_waitcnt vmcnt(0)")
    common.stamp(2)
    for i in range(24):
        e(f"v_lshlrev_b32 v{XU+2*i}, 16, v{XF+i}")
        e(f"v_and_b32 v{XU+2*i+1}, 0xffff0000, v{XF+i}")
    def reduce_(src_sq, ldsoff, dst):
        if src_sq:
            e(f"v_mul_f32 v{dst}, v{XF}, v{XF}") if False else None
        pass
    e(f"v_mul_u32_u24 v1, 48, v3")
    e(f"v_lshlrev_b32 v4, 2, v2")
    e(f"s_lshl_b32 s{ST4}, s{SW}, 3")
    e(f"v_add3_u32 v4, v1, v4, s{ST4}")
    for q in range(4): e(f"v_add_f32 v{T0+q}, v{XU+q}, v{XU+4+q}")
    for i in range(8, 48): e(f"v_add_f32 v{T0+i%4}, v{T0+i%4}, v{XU+i}")
    e(f"v_add_f32 v{T0}, v{T0}, v{T0+1}"); e(f"v_add_f32 v{T0+2}, v{T0+2}, v{T0+3}"); e(f"v_add_f32 v{T0}, v{T0}, v{T0+2}")
    e(f"ds_write_b32 v4, v{T0}")
    e("s_waitcnt lgkmcnt(0)"); e("s_barrier")
    def rd12(off, dst):
        for q in range(3): e(f"ds_read_b128 {vr(XF+4*q,4)}, v1 offset:{off+16*q}")
        e("s_waitcnt lgkmcnt(0)")
        for q in range(4): e(f"v_add_f32 v{XF+q}, v{XF+q}, v{XF+4+q}")
        for q in range(4): e(f"v_add_f32 v{XF+q}, v{XF+q}, v{XF+8+q}")
        e(f"v_add_f32 v{XF}, v{XF}, v{XF+1}"); e(f"v_add_f32 v{XF+2}, v{XF+2}, v{XF+3}"); e(f"v_add_f32 v{dst}, v{XF}, v{XF+2}")
        e(f"v_mul_f32 v{dst}, {f2u(1.0/576)}, v{dst}")
    rd12(0, T0+4)
    for q in range(4): e(f"v_mov_b32 v{T0+q}, 0")
    for i in range(48):
        e(f"v_sub_f32 v{T0+8}, v{XU+i}, v{T0+4}") if i % 2 == 0 else e(f"v_sub_f32 v{T0+9}, v{XU+i}, v{T0+4}")
        t = T0+8+(i % 2)
        e(f"v_fmac_f32 v{T0+i%4}, v{t}, v{t}")
    e(f"v_add_f32 v{T0}, v{T0}, v{T0+1}"); e(f"v_add_f32 v{T0+2}, v{T0+2}, v{T0+3}"); e(f"v_add_f32 v{T0}, v{T0}, v{T0+2}")
    e(f"ds_write_b32 v4, v{T0} offset:2048")
    e("s_waitcnt lgkmcnt(0)"); e("s_barrier")
    rd12(2048, T0+5)
    e(f"v_cvt_pk_bf16_f32 v{T0+6}, v{T0+4}, v{T0+5}")
    e(f"v_lshlrev_b32 v{T0+4}, 16, v{T0+6}")
    e(f"v_and_b32 v{T0+5}, 0xffff0000, v{T0+6}")
    e(f"v_add_f32 v{T0+5}, {f2u(1e-5)}, v{T0+5}")
    e(f"v_cvt_pk_bf16_f32 v{T0+5}, v{T0+5}, v{T0+5}")
    e(f"v_lshlrev_b32 v{T0+5}, 16, v{T0+5}")
    e(f"v_sqrt_f32 v{T0+5}, v{T0+5}")
    e("s_nop 0")
    e(f"v_cvt_pk_bf16_f32 v{T0+5}, v{T0+5}, v{T0+5}")
    e(f"v_lshlrev_b32 v{T0+5}, 16, v{T0+5}")
    e(f"v_rcp_f32 v{T0+5}, v{T0+5}")
    e("s_nop 0")
    for i in range(24):
        a, b = XU+2*i, XU+2*i+1
        e(f"v_sub_f32 v{a}, v{a}, v{T0+4}"); e(f"v_sub_f32 v{b}, v{b}, v{T0+4}")
        e(f"v_cvt_pk_bf16_f32 v{b}, v{a}, v{b}")
        e(f"v_lshlrev_b32 v{a}, 16, v{b}"); e(f"v_and_b32 v{b}, 0xffff0000, v{b}")
        e(f"v_mul_f32 v{a}, v{a}, v{T0+5}"); e(f"v_mul_f32 v{b}, v{b}, v{T0+5}")
        e(f"v_cvt_pk_bf16_f32 v{XF+i}, v{a}, v{b}")
    e("v_lshlrev_b32 v4, 4, v0")
    e(f"s_mul_i32 s{ST4}, s{SW}, {6*1024}")
    e(f"s_add_u32 s{ST5}, s{ST4}, 4096")
    e(f"v_add_u32 v1, s{ST5}, v4")
    for i in range(6): e(f"ds_write_b128 v1, {vr(XF+4*i,4)} offset:{1024*i}")
    e(f"s_cmp_lg_u32 s{ST2}, 0")
    e("s_cbranch_scc1 Lprep_A2")
    srd(12, 6, OFF['XN'], SZ['XN'])
    e(f"s_mul_i32 s{ST5}, s{ST}, {36*1024}")
    e(f"s_add_u32 s{ST5}, s{ST5}, s{ST4}")
    for i in range(6):
        e(f"s_add_u32 s{ST4}, s{ST5}, {1024*i}")
        e(f"buffer_store_dwordx4 {vr(XF+4*i,4)}, v4, s[12:15], s{ST4} offen")
    lab("Lprep_A2")
    for r in range(16): e(f"v_mov_b32 v{ACC+r}, 0")
    e("s_waitcnt lgkmcnt(0)"); e("s_barrier")
    common.stamp(3)
    e("v_add_u32 v1, 4096, v4")
    for ks in range(12): e(f"ds_read_b128 {vr(XU+4*ks,4)}, v1 offset:{1024*ks}")
    for ks in range(36):
        out = min(35, max(11, ks+10)) - ks
        e(f"s_waitcnt lgkmcnt({min(out,15)})")
        mfma(ACC, XU+4*(ks % 12), FF+4*ks)
        if ks >= 1 and ks + 11 < 36:
            k2 = ks + 11
            e(f"ds_read_b128 {vr(XU+4*(k2 % 12),4)}, v1 offset:{1024*k2}")
    e("s_nop 7"); e("s_nop 7")
    for r in range(8): e(f"v_cvt_pk_bf16_f32 v{XF+r}, v{ACC+2*r}, v{ACC+2*r+1}")
    srd(12, 6, OFF['PT'], SZ['PT'])
    e("v_and_b32 v5, 15, v0")
    e(f"s_lshl_b32 s{ST4}, s{ST3}, 4")
    e(f"v_add_u32 v5, s{ST4}, v5")
    e("v_bfe_u32 v6, v0, 4, 1")
    e("v_lshl_add_u32 v5, v5, 1, v6")
    e("v_lshlrev_b32 v5, 12, v5")
    e("v_lshl_add_u32 v5, v2, 3, v5")
    e(f"s_lshl_b32 s{ST4}, s{ST}, 6")
    for q in range(4):
        e(f"buffer_store_dwordx2 {vr(XF+2*q,2)}, v5, s[12:15], s{ST4} offen offset:{16*q}")
    e("s_waitcnt vmcnt(0)")
    common.stamp(4); common.stamp(6, True); common.stamp_out(7, SW, 6, 0); e("s_waitcnt vmcnt(0)")
    e("s_endpgm")
    lab("Lprep_B")
    e(f"s_sub_u32 s{ST}, s2, {NA}")
    e(f"s_mul_i32 s{ST}, s{ST}, 6")
    e(f"s_add_u32 s{ST}, s{ST}, s{SW}")
    e(f"s_cmp_ge_u32 s{ST}, 512")
    e("s_cbranch_scc1 Lprep_end")
    e(f"s_and_b32 s{ST2}, s{ST}, 31")
    e(f"s_lshr_b32 s{ST3}, s{ST}, 5")
    e("s_waitcnt lgkmcnt(0)")
    srd(12, 8, 0, 2048*578); srd(16, 10, 0, 2048*578); srd(28, 6, OFF['WT'], SZ['WT'])
    e("v_lshlrev_b32 v4, 1, v0")
    e("v_cmp_lt_u32 vcc, 32, v0")
    e("v_mov_b32 v7, 0x40000000")
    e("v_mov_b32 v6, 0")
    e("v_cndmask_b32 v6, v6, v7, vcc")
    e("v_add_u32 v6, v6, v4")
    e(f"s_lshl_b32 s{ST4}, s{ST3}, 7")
    e(f"s_add_u32 s{ST4}, s{ST4}, s{ST2}")
    e(f"s_mul_i32 s{ST4}, s{ST4}, 578")
    for i in range(4):
        if i: e(f"s_add_u32 s{ST4}, s{ST4}, {32*578}")
        for cg in range(5):
            va = "v6" if cg == 4 else "v4"
            e(f"buffer_load_ushort v{8+cg*4+i}, {va}, s[12:15], s{ST4} offen offset:{128*cg}")
            e(f"buffer_load_ushort v{32+cg*4+i}, {va}, s[16:19], s{ST4} offen offset:{128*cg}")
    e(f"s_lshr_b32 s{ST4}, s{ST3}, 1")
    e(f"s_lshl_b32 s{ST4}, s{ST4}, 10")
    e(f"s_and_b32 s{ST5}, s{ST3}, 1")
    e(f"s_lshl_b32 s{ST5}, s{ST5}, 5")
    e(f"s_add_u32 s{ST5}, s{ST5}, s{ST2}")
    e(f"s_lshl_b32 s{ST5}, s{ST5}, 4")
    e(f"s_add_u32 s{ST4}, s{ST4}, s{ST5}")
    e("v_lshlrev_b32 v5, 13, v0")
    e("s_waitcnt vmcnt(0)")
    for cg in range(5):
        for i in range(4): e(f"v_lshl_or_b32 v{8+cg*4+i}, v{32+cg*4+i}, 16, v{8+cg*4+i}")
        e(f"buffer_store_dwordx4 {vr(8+cg*4,4)}, v5, s[28:31], s{ST4} offen")
        if cg < 4: e(f"v_add_u32 v5, {64*8192}, v5")
    e("s_waitcnt vmcnt(0)")
    e("s_endpgm")
    lab("Lprep_C")
    e(f"s_sub_u32 s{ST}, s2, {NA+NB_}")
    e(f"s_mul_i32 s{ST}, s{ST}, 6")
    e(f"s_add_u32 s{ST}, s{ST}, s{SW}")
    e(f"s_cmp_ge_u32 s{ST}, 692")
    e("s_cbranch_scc1 Lprep_end")
    e("s_waitcnt lgkmcnt(0)")
    e("v_lshlrev_b32 v4, 4, v0")
    e(f"s_cmp_ge_u32 s{ST}, 648")
    e("s_cbranch_scc1 Lprep_D")
    srd(12, 6, OFF['FINV'], SZ['FINV'])
    e(f"s_mul_i32 s{ST2}, s{ST}, 1821")
    e(f"s_lshr_b32 s{ST2}, s{ST2}, 16")
    e(f"s_mul_i32 s{ST3}, s{ST2}, 36")
    e(f"s_sub_u32 s{ST3}, s{ST}, s{ST3}")
    e(f"s_lshl_b32 s{ST2}, s{ST2}, 5")
    e(f"v_add_u32 v5, s{ST2}, v3")
    e(f"s_lshl_b32 s{ST3}, s{ST3}, 3")
    e(f"v_lshl_add_u32 v6, v2, 2, s{ST3}")
    e(f"s_mov_b32 s{ST4}, {f2u(1.0/576)}")
    e(f"v_mov_b32 v7, {f2u(2.0/576)}")
    e(f"v_mov_b32 v18, {f2u(1.0/576)}")
    e("v_cmp_eq_u32 vcc, 0, v6")
    e("s_nop 1")
    e("v_cndmask_b32 v18, v7, v18, vcc")
    e("v_mov_b32 v19, 288")
    e("v_cndmask_b32 v19, v6, v19, vcc")
    e(f"v_mov_b32 v20, {f2u(0.25)}")
    e("v_mov_b32 v21, 0")
    e("v_cndmask_b32 v20, v20, v21, vcc")
    for j in range(8):
        t = 8+j
        if j == 1: e(f"v_mul_u32_u24 v{t}, v19, v5")
        else:
            e(f"v_add_u32 v{t}, {j>>1}, v6")
            e(f"v_mul_u32_u24 v{t}, v{t}, v5")
        e(f"v_cvt_f32_u32 v{t}, v{t}")
        e(f"v_mul_f32 v{t}, s{ST4}, v{t}")
        e(f"v_fract_f32 v{t}, v{t}")
        if j == 1: e(f"v_add_f32 v{t}, v20, v{t}")
        elif j & 1: e(f"v_add_f32 v{t}, {f2u(0.25)}, v{t}")
        e(f"v_cos_f32 v{t}, v{t}")
        e("s_nop 0")
        e(f"v_mul_f32 v{t}, v{18 if j < 2 else 7}, v{t}")
    for p in range(4): e(f"v_cvt_pk_bf16_f32 v{24+p}, v{8+2*p}, v{9+2*p}")
    e(f"s_lshl_b32 s{ST}, s{ST}, 10")
    e(f"buffer_store_dwordx4 v[24:27], v4, s[12:15], s{ST} offen")
    e("s_waitcnt vmcnt(0)")
    e("s_endpgm")
    lab("Lprep_D")
    srd(12, 6, OFF['DT'], SZ['DT'])
    e(f"s_sub_u32 s{ST}, s{ST}, 648")
    e(f"s_cmp_ge_u32 s{ST}, 28")
    e("s_cbranch_scc1 Lprep_TW")
    e(f"s_cmp_ge_u32 s{ST}, 12")
    e("s_cbranch_scc1 Lprep_D64")
    e(f"s_mov_b32 s{ST2}, 0")
    e(f"s_and_b32 s{ST3}, s{ST}, 1"); e(f"s_lshl_b32 s{ST3}, s{ST3}, 4")
    e(f"s_mov_b32 s{ST4}, {f2u(1/32)}")
    e(f"s_lshr_b32 s28, s{ST}, 1")
    e(f"s_mov_b32 s{ST5}, 0")
    e("s_cmp_eq_u32 s28, 1"); e(f"s_cselect_b32 s{ST5}, {f2u(0.75)}, s{ST5}")
    e("s_cmp_eq_u32 s28, 2"); e(f"s_cselect_b32 s{ST5}, {f2u(0.25)}, s{ST5}")
    e("s_cmp_eq_u32 s28, 4"); e(f"s_cselect_b32 s{ST5}, {f2u(0.75)}, s{ST5}")
    e("s_cmp_ge_u32 s28, 3")
    e(f"s_cselect_b32 s26, {f2u(1/2048)}, 1.0")
    e("s_cselect_b32 s27, 1, 0")
    e("s_branch Lprep_Dgo")
    lab("Lprep_D64")
    e(f"s_sub_u32 s28, s{ST}, 12")
    e(f"s_bfe_u32 s{ST2}, s28, {(1<<16)|2}"); e(f"s_lshl_b32 s{ST2}, s{ST2}, 5")
    e(f"s_and_b32 s{ST3}, s28, 3"); e(f"s_lshl_b32 s{ST3}, s{ST3}, 4")
    e(f"s_mov_b32 s{ST4}, {f2u(1/64)}")
    e("s_cmp_ge_u32 s28, 8"); e(f"s_cselect_b32 s{ST5}, {f2u(0.75)}, 0")
    e("s_mov_b32 s26, 1.0"); e("s_mov_b32 s27, 1")
    lab("Lprep_Dgo")
    e(f"v_add_u32 v5, s{ST2}, v3")
    e("s_cmp_eq_u32 s27, 1")
    e("s_cselect_b32 s29, 2, 3")
    e("s_cselect_b32 s30, 4, 0")
    e("v_lshlrev_b32 v6, s29, v2")
    e(f"v_add_u32 v6, s{ST3}, v6")
    for j in range(8):
        t = 8+j
        e(f"v_add_u32 v{t}, {j}, v6")
        if j >= 4: e(f"v_add_u32 v{t}, s30, v{t}")
        e(f"v_mul_u32_u24 v{t}, v{t}, v5")
        e(f"v_cvt_f32_u32 v{t}, v{t}")
        e(f"v_mul_f32 v{t}, s{ST4}, v{t}")
        e(f"v_fract_f32 v{t}, v{t}")
        e(f"v_add_f32 v{t}, s{ST5}, v{t}")
        e(f"v_cos_f32 v{t}, v{t}")
        e("s_nop 0")
        e(f"v_mul_f32 v{t}, s26, v{t}")
    for p in range(4): e(f"v_cvt_pk_bf16_f32 v{24+p}, v{8+2*p}, v{9+2*p}")
    e(f"s_lshl_b32 s{ST}, s{ST}, 10")
    e(f"buffer_store_dwordx4 v[24:27], v4, s[12:15], s{ST} offen")
    e("s_waitcnt vmcnt(0)")
    e("s_endpgm")
    lab("Lprep_TW")
    e(f"s_sub_u32 s28, s{ST}, 28")
    e("s_and_b32 s29, s28, 3"); e("s_lshl_b32 s29, s29, 3")
    e(f"s_bfe_u32 s30, s28, {(1<<16)|2}"); e("s_lshl_b32 s30, s30, 5")
    e("s_cmp_ge_u32 s28, 8")
    e("s_cselect_b32 s31, 0, s30"); e("s_cselect_b32 s30, s30, 0")
    e("s_add_u32 s29, s29, s31")
    e("v_lshl_add_u32 v6, v2, 2, s29")
    e("v_add_u32 v5, s30, v3")
    for i in range(4):
        t = 8+2*i
        e(f"v_add_u32 v{t}, {i}, v6"); e(f"v_mul_u32_u24 v{t}, v{t}, v5"); e(f"v_cvt_f32_u32 v{t}, v{t}")
        e(f"v_mul_f32 v{t}, {f2u(1/2048)}, v{t}")
        e(f"v_sin_f32 v{t+1}, v{t}"); e(f"v_cos_f32 v{t}, v{t}"); e("s_nop 0")
        e(f"v_cvt_pk_bf16_f32 v{24+i}, v{t}, v{t+1}")
    e(f"s_lshl_b32 s{ST}, s{ST}, 10")
    e(f"buffer_store_dwordx4 v[24:27], v4, s[12:15], s{ST} offen")
    e("s_waitcnt vmcnt(0)")
    lab("Lprep_end")
    e("s_endpgm")
    return 256, 4096+36*1024, NA+NB_+NC
```

```python
import sys
sys.path.insert(0,'gen')
import build, gemm, common
def mk(path, only=None, **kw):
    for k in ['REPEAT','NO_DMA','NO_LDS','NO_BAR','NO_W','NO_B']: setattr(gemm, k, kw.get(k, 0))
    common.STAMP = kw.get('STAMP', 0)
    build.build(path, only=only, **{k: v for k, v in kw.items() if k in ('F1','G2')})
if __name__ == "__main__":
    mk('st_f1.s', only=['prep_kernel','ffn1_kernel'], STAMP=1)
    mk('st_g2.s', only=['prep_kernel','g2_kernel'], STAMP=1)
    mk('st_all.s', STAMP=1)
    mk('st_p.s', only=['prep_kernel'], STAMP=1)
```

```python
from common import *
import common
LNT=' nt'; SNT=''
def fin_kernel():
    SW=20; ST=21; ST2=22; ST3=23; STB=24; SDB=25; SOUT=26; SKH=27
    PA=8; XR=72; FI=80; ACC=152; ACCB=168; BF=184
    e("s_cmp_ge_u32 s2, 192")
    e("s_cbranch_scc1 Lfin_end")
    common.stamp(0); common.stamp(5, True)
    e(f"s_load_dwordx2 s[4:5], s[0:1], {A_X}")
    e(f"s_load_dwordx2 s[6:7], s[0:1], {K_WS}")
    e(f"s_load_dwordx2 s[8:9], s[0:1], {K_OUT}")
    e("v_lshrrev_b32 v1, 6, v0")
    e("v_and_b32 v0, 63, v0")
    e("s_nop 0")
    e(f"v_readfirstlane_b32 s{SW}, v1")
    e("v_lshrrev_b32 v2, 5, v0")
    e("v_and_b32 v3, 31, v0")
    e(f"s_and_b32 s{ST}, s2, 31")
    e(f"s_lshr_b32 s{ST2}, s2, 5")
    e(f"s_lshl_b32 s{STB}, s{ST}, 1")
    e(f"s_and_b32 s{ST3}, s{SW}, 1")
    e(f"s_add_u32 s{STB}, s{STB}, s{ST3}")
    e(f"s_mul_i32 s{SDB}, s{ST2}, 3")
    e(f"s_lshr_b32 s{ST3}, s{SW}, 1")
    e(f"s_add_u32 s{SDB}, s{SDB}, s{ST3}")
    e("s_waitcnt lgkmcnt(0)")
    srd(12, 6, OFF['QT'], SZ['QT']); srd(16, 6, OFF['FINV'], SZ['FINV']); srd(28, 6, OFF['PART'], SZ['PART'])
    srd(32, 4, 0, 2048*1152); srd(36, 8, 0, 2048*1152)
    e("v_lshlrev_b32 v5, 4, v0")
    e(f"s_mul_i32 s{ST3}, s{STB}, 18"); e(f"s_add_u32 s{ST3}, s{ST3}, s{SDB}"); e(f"s_lshl_b32 s{ST3}, s{ST3}, 11")
    for sp in range(8):
        if sp: e(f"s_add_u32 s{ST3}, s{ST3}, {64*18*2048}")
        e(f"buffer_load_dwordx4 {vr(PA+8*sp,4)}, v5, s[28:31], s{ST3} offen{LNT}")
        e(f"buffer_load_dwordx4 {vr(PA+8*sp+4,4)}, v5, s[28:31], s{ST3} offen offset:1024{LNT}")
    e("v_lshlrev_b32 v6, 6, v3"); e(f"v_add_u32 v6, s{STB}, v6"); e("v_mul_u32_u24 v6, 1152, v6")
    e("v_lshl_add_u32 v6, v2, 5, v6")
    e(f"s_lshl_b32 s{SOUT}, s{SDB}, 6")
    for q in range(2): e(f"buffer_load_dwordx4 {vr(XR+4*q,4)}, v6, s[32:35], s{SOUT} offen offset:{16*q}")
    e("v_lshrrev_b32 v4, 3, v0"); e("v_lshlrev_b32 v4, 12, v4")
    e("v_and_b32 v1, 7, v0"); e("v_lshl_add_u32 v4, v1, 4, v4")
    e(f"s_lshl_b32 s{ST}, s{ST}, 7")
    e(f"s_mul_i32 s{ST2}, s{SW}, {12*8*4096}")
    e(f"s_add_u32 s{ST}, s{ST}, s{ST2}")
    e(f"s_mul_i32 s{ST2}, s{SW}, {12*1024}")
    for i in range(12):
        e(f"s_add_u32 m0, s{ST2}, {i*1024}")
        e(f"s_add_u32 s{ST3}, s{ST}, {i*8*4096}")
        e(f"buffer_load_dwordx4 v4, s[12:15], s{ST3} offen lds")
    e(f"s_and_b32 s{SKH}, s{SW}, 1")
    e(f"s_lshl_b32 s{ST}, s{SDB}, 1"); e(f"s_add_u32 s{ST}, s{ST}, s{SKH}"); e(f"s_mul_i32 s{ST}, s{ST}, {18*1024}")
    for ks in range(18):
        if ks % 4 == 0 and ks: e(f"s_add_u32 s{ST}, s{ST}, 4096")
        e(f"buffer_load_dwordx4 {vr(FI+4*ks,4)}, v5, s[16:19], s{ST} offen offset:{(ks%4)*1024}")
    e("v_bfe_u32 v7, v0, 2, 2"); e("v_lshl_add_u32 v7, v2, 3, v7"); e("v_lshlrev_b32 v7, 7, v7")
    e("v_bfe_u32 v1, v0, 4, 1"); e("v_lshl_add_u32 v7, v1, 5, v7")
    e("v_and_b32 v1, 3, v0"); e("v_lshl_add_u32 v7, v1, 3, v7")
    e(f"s_mul_i32 s{ST3}, s{SKH}, {288*128}"); e(f"v_add_u32 v7, s{ST3}, v7")
    e(f"s_lshl_b32 s{ST3}, s{SKH}, 6")
    e(f"v_add_u32 v1, s{ST3}, v7")
    e(f"s_xor_b32 s{ST3}, s{ST3}, 64")
    e(f"v_add_u32 v7, s{ST3}, v7")
    e("v_mov_b32 v2, 0x3f80"); e("v_mov_b32 v3, 0x3f800000")
    e(f"s_mul_i32 s{ST}, s{SW}, 4096"); e(f"s_add_u32 s{ST2}, s{ST}, {72*1024}"); e(f"v_add_u32 v4, s{ST2}, v5")
    e(f"s_xor_b32 s{ST}, s{SW}, 1"); e(f"s_mul_i32 s{ST}, s{ST}, 4096"); e(f"s_add_u32 s{ST2}, s{ST}, {72*1024}"); e(f"v_add_u32 v5, s{ST2}, v5")
    common.stamp(1)
    e("s_waitcnt vmcnt(18)")
    e("s_barrier")
    common.stamp(2)
    def rd(ks):
        o = ks*16*128
        for t, v in ((0, "v7"), (1, "v1")):
            a = BF + 8*(ks % 4) + 4*t
            e(f"ds_read_b64_tr_b16 {vr(a,2)}, {v} offset:{o}")
            e(f"ds_read_b64_tr_b16 {vr(a+2,2)}, {v} offset:{o+4*128}")
    for ks in range(3): rd(ks)
    for ks in range(18):
        out = min(17, ks+2) - ks
        e(f"s_waitcnt vmcnt({17-ks}) lgkmcnt({4*out})")
        mfma(ACCB, FI+4*ks, BF+8*(ks % 4), "0" if ks == 0 else None)
        mfma(ACC, FI+4*ks, BF+8*(ks % 4)+4, "0" if ks == 0 else None)
        if ks + 3 < 18: rd(ks+3)
    common.stamp(3)
    e("s_nop 15"); e("s_nop 7")
    for q in range(4): e(f"ds_write_b128 v4, {vr(ACCB+4*q,4)} offset:{1024*q}")
    e("s_nop 7")
    IDX = {0:0, 2:2, 1:4, 3:6}
    for (a_, b_) in ((0,2),(1,3),(4,6),(5,7)): e(f"v_permlane32_swap_b32 v{XR+a_}, v{XR+b_}")
    for sp in range(9):
        for p in range(8):
            src_ = PA+8*sp+p if sp < 8 else XR+IDX[p//2]+p%2
            e(f"v_dot2_f32_bf16 v{ACC+2*p}, v{src_}, v2, v{ACC+2*p}")
            e(f"v_dot2_f32_bf16 v{ACC+2*p+1}, v{src_}, v3, v{ACC+2*p+1}")
    e("s_waitcnt lgkmcnt(0)")
    e("s_barrier")
    for q in range(4): e(f"ds_read_b128 {vr(ACCB+4*q,4)}, v5 offset:{1024*q}")
    for q in range(4):
        e(f"s_waitcnt lgkmcnt({3-q})")
        for r in range(4): e(f"v_add_f32 v{ACC+4*q+r}, v{ACC+4*q+r}, v{ACCB+4*q+r}")
        for r in range(2): e(f"v_cvt_pk_bf16_f32 v{XR+IDX[q]+r}, v{ACC+4*q+2*r}, v{ACC+4*q+2*r+1}")
    e("s_nop 1")
    for (a_, b_) in ((0,2),(1,3),(4,6),(5,7)): e(f"v_permlane32_swap_b32 v{XR+a_}, v{XR+b_}")
    for q in range(2): e(f"buffer_store_dwordx4 {vr(XR+4*q,4)}, v6, s[36:39], s{SOUT} offen offset:{16*q}{SNT}")
    common.stamp(4); common.stamp(6, True); common.stamp_out(7, SW, 6, 0); e("s_waitcnt vmcnt(0)")
    lab("Lfin_end")
    e("s_endpgm")
    return 216, 96*1024, 192
```

```python
from common import *
import common
import math
REPEAT = 0
NO_DMA = 0
NO_LDS = 0
NO_BAR = 0
NO_W = 0
NO_B = 0
def gemm_kernel(mode, NW, BK, NSLOT, NB, PF=0):
    F1 = mode == "ffn1"
    KS = BK//16
    NCH = 576//BK
    FPC = 9*KS
    if F1:
        REG = BK*288
        STR = (2*REG + 128 + 255)//256*256
        NDMA = 2*REG//1024
        upr = 18
    else:
        REG = BK*576
        STR = REG
        NDMA = REG//1024
        upr = 36
    T = (NDMA + NW - 1)//NW
    GS = (0 if NO_W else T) + (0 if NO_B else KS)
    ACC = 0; AR = 144; BR = AR + 24; VA = BR + NB*KS*4
    VO = VA + NSLOT
    VB = VO + T
    VT = VB + 1
    SR = 20
    SM = SR + 4*T
    SW = SM + T
    SO = SW + 1
    SB = SW + 2
    ST = SW + 3; ST2 = SW + 4; ST3 = SW+5
    assert ST3 < 66, ST3
    common.stamp(0); common.stamp(5, True)
    e(f"s_load_dwordx2 s[4:5], s[0:1], {B_WG if F1 else B_WD}")
    if F1: e(f"s_load_dwordx2 s[6:7], s[0:1], {B_WU}")
    e(f"s_load_dwordx2 s[8:9], s[0:1], {K_WS}")
    e(f"v_lshrrev_b32 v{VT}, 6, v0")
    e(f"v_and_b32 v0, 63, v0")
    e("s_nop 0")
    e(f"v_readfirstlane_b32 s{SW}, v{VT}")
    e(f"s_and_b32 s{ST}, s2, 7")
    e(f"s_lshr_b32 s{ST2}, s2, 3")
    if F1:
        e(f"s_lshr_b32 s{ST3}, s{ST2}, 3")
        e(f"s_lshl_b32 s{ST}, s{ST}, 2")
        e(f"s_add_u32 s{ST}, s{ST}, s{ST3}")
        e(f"s_and_b32 s{ST2}, s{ST2}, 7")
        e(f"s_lshl_b32 s{ST2}, s{ST2}, 3")
        e(f"s_add_u32 s{ST2}, s{ST2}, s{SW}")
        e(f"s_mul_i32 s{SO}, s{ST}, 288")
        e(f"s_mul_i32 s{SB}, s{ST2}, {36*1024}")
        e(f"s_mul_i32 s{ST3}, s{ST2}, 288")
        e(f"s_mul_i32 s{ST}, s{ST}, 9")
        e(f"s_add_u32 s{ST3}, s{ST3}, s{ST}")
        e(f"s_lshl_b32 s3, s{ST3}, 10")
    else:
        e(f"s_and_b32 s{ST3}, s{ST2}, 1")
        e(f"s_lshr_b32 s{ST2}, s{ST2}, 1")
        e(f"s_lshl_b32 s{ST2}, s{ST2}, 2")
        e(f"s_add_u32 s{ST2}, s{ST2}, s{SW}")
        e(f"s_mul_i32 s{SO}, s{ST}, {576*1152}")
        e(f"s_mul_i32 s3, s{ST3}, 576")
        e(f"s_add_u32 s{SO}, s{SO}, s3")
        e(f"s_mul_i32 s{SB}, s{ST2}, 288")
        e(f"s_mul_i32 s3, s{ST}, 36")
        e(f"s_add_u32 s{SB}, s{SB}, s3")
        e(f"s_lshl_b32 s{SB}, s{SB}, 10")
        e(f"s_lshl_b32 s3, s{ST}, 6")
        e(f"s_add_u32 s3, s3, s{ST2}")
        e(f"s_mul_i32 s3, s3, 18")
        e(f"s_mul_i32 s{ST3}, s{ST3}, 9")
        e(f"s_add_u32 s3, s3, s{ST3}")
        e(f"s_lshl_b32 s3, s3, 11")
    for t in range(T):
        e(f"s_add_u32 s{ST}, s{SW}, {NW*t}")
        if F1:
            half = NDMA//2
            e(f"s_cmp_ge_u32 s{ST}, {half}")
            e(f"s_cselect_b32 s{ST2}, {half}, 0")
            e(f"s_cselect_b32 s{ST3}, {REG+128}, 0")
            e(f"s_sub_u32 s{ST2}, s{ST}, s{ST2}")
        else:
            e(f"s_mov_b32 s{ST2}, s{ST}")
            e(f"s_mov_b32 s{ST3}, 0")
        e(f"s_lshl_b32 s{SM+t}, s{ST2}, 10")
        e(f"s_add_u32 s{SM+t}, s{SM+t}, s{ST3}")
        e(f"s_lshl_b32 s{ST2}, s{ST2}, 6")
        e(f"v_add_u32 v{VT}, s{ST2}, v0")
        divmagic(VT+1, VT, upr, ST2, maxv=4096)
        e(f"v_mul_u32_u24 v{VT+2}, {upr}, v{VT+1}")
        e(f"v_sub_u32 v{VT}, v{VT}, v{VT+2}")
        e(f"v_lshlrev_b32 v{VT}, 4, v{VT}")
        if F1:
            hb = BK//2
            e(f"v_lshrrev_b32 v{VT+2}, {int(math.log2(hb))}, v{VT+1}")
            e(f"v_and_b32 v{VT+1}, {hb-1}, v{VT+1}")
            e(f"v_mul_u32_u24 v{VT+2}, 288, v{VT+2}")
            e(f"v_add_u32 v{VT+1}, v{VT+1}, v{VT+2}")
            e(f"s_mov_b32 s{ST2}, 9216")
            e(f"v_mul_lo_u32 v{VT+1}, s{ST2}, v{VT+1}")
        else:
            e(f"v_mul_u32_u24 v{VT+1}, 1152, v{VT+1}")
        e(f"v_add_u32 v{VO+t}, v{VT}, v{VT+1}")
        if NW*t + NW - 1 >= NDMA:
            e(f"s_cmp_ge_u32 s{ST}, {NDMA}")
            e(f"s_cselect_b32 s{ST2}, 0x40000000, 0")
            assert (2*NSLOT-1)*STR + 1024 < 262144
            e(f"s_cselect_b32 s{SM+t}, {NSLOT*STR}, s{SM+t}")
            e(f"v_add_u32 v{VO+t}, s{ST2}, v{VO+t}")
    e(f"v_lshlrev_b32 v{VB}, 4, v0")
    e(f"v_lshrrev_b32 v{VT}, 5, v0")
    e(f"v_bfe_u32 v{VT+1}, v0, 4, 1")
    e(f"v_bfe_u32 v{VT+2}, v0, 2, 2")
    e(f"v_and_b32 v{VT+3}, 3, v0")
    e(f"v_lshlrev_b32 v{VT+3}, 3, v{VT+3}")
    if F1:
        e(f"v_mul_u32_u24 v{VT}, {BK//2}, v{VT}")
        e(f"v_add_u32 v{VT}, v{VT}, v{VT+2}")
        e(f"v_mul_u32_u24 v{VT}, 288, v{VT}")
        e(f"v_mul_u32_u24 v{VT+1}, {REG+128}, v{VT+1}")
    else:
        e(f"v_lshlrev_b32 v{VT}, 2, v{VT}")
        e(f"v_add_u32 v{VT}, v{VT}, v{VT+2}")
        e(f"v_mul_u32_u24 v{VT}, 576, v{VT}")
        e(f"v_lshlrev_b32 v{VT+1}, 5, v{VT+1}")
    e(f"v_add3_u32 v{VA}, v{VT}, v{VT+1}, v{VT+3}")
    for s in range(1, NSLOT):
        e(f"v_add_u32 v{VA+s}, {s*STR}, v{VA}")
    e("s_waitcnt lgkmcnt(0)")
    wsz = 576*9216 if F1 else 4608*1152
    for t in range(T):
        d = SR + 4*t
        if F1:
            e(f"s_add_u32 s{ST}, s{SW}, {NW*t}")
            e(f"s_cmp_ge_u32 s{ST}, {NDMA//2}")
            e(f"s_cselect_b32 s{d}, s6, s4")
            e(f"s_cselect_b32 s{d+1}, s7, s5")
        else:
            e(f"s_mov_b32 s{d}, s4"); e(f"s_mov_b32 s{d+1}, s5")
        e(f"s_mov_b32 s{d+2}, {wsz}"); e(f"s_mov_b32 s{d+3}, 0x00020000")
    srd(12, 8, OFF['XN' if F1 else 'H'], SZ['XN' if F1 else 'H'])
    srd(16, 8, OFF['H' if F1 else 'PART'], SZ['H' if F1 else 'PART'])
    rowb = 9216 if F1 else 1152
    chrows = BK//2 if F1 else BK
    issued = []
    def issueW(k):
        if NO_DMA or NO_W or k >= NCH: return
        e(f"s_add_u32 s{ST}, s{SO}, {k*chrows*rowb}")
        for t in range(T):
            e(f"s_add_u32 m0, s{SM+t}, {(k%NSLOT)*STR}")
            if t == 0: e("s_nop 0")
            else: e(f"s_nop 0")
            e(f"buffer_load_dwordx4 v{VO+t}, s[{SR+4*t}:{SR+4*t+3}], s{ST} offen lds")
            issued.append(("W", k))
    def issueB(k):
        if NO_DMA or NO_B or k >= NCH: return
        e(f"s_add_u32 s{ST2}, s{SB}, {k*KS*1024}")
        for q in range(KS):
            e(f"buffer_load_dwordx4 {vr(BR+((k%NB)*KS+q)*4,4)}, v{VB}, s[12:15], s{ST2} offen offset:{q*1024}")
            issued.append(("B", k))
    def reads(g):
        if NO_LDS: return
        cch = g//FPC; w = g % FPC; kq = w//9; nb = w % 9
        a = AR + 4*(g % 6)
        if F1:
            o1 = (8*kq)*288 + nb*32; o2 = o1 + 4*288
        else:
            o1 = (16*kq)*576 + nb*64; o2 = o1 + 8*576
        e(f"ds_read_b64_tr_b16 {vr(a,2)}, v{VA+cch%NSLOT} offset:{o1}")
        e(f"ds_read_b64_tr_b16 {vr(a+2,2)}, v{VA+cch%NSLOT} offset:{o2}")
    def sync(cc):
        need = [i for i, x in enumerate(issued) if x[1] <= cc+1 and x[0] != "X"]
        allowed = len(issued) - 1 - max(need) if need else len(issued)
        e(f"s_waitcnt vmcnt({min(allowed, 63)})")
        if not NO_BAR: e("s_barrier")
        issueW(cc + NSLOT - 1)
    if REPEAT:
        e(f's_mov_b32 s95, {REPEAT}'); lab(f'Lrep_{mode}')
    issueW(0); issueB(0)
    if PF:
        e(f"s_lshr_b32 s{ST3}, s2, 3"); e(f"s_mul_i32 s{ST3}, s{ST3}, {18*1152}")
        e(f"s_and_b32 s{ST2}, s2, 7"); e(f"s_mul_i32 s{ST2}, s{ST2}, {576*1152}"); e(f"s_add_u32 s{ST3}, s{ST3}, s{ST2}")
        e(f"s_mul_i32 s{ST2}, s{SW}, {5184}"); e(f"s_add_u32 s{ST3}, s{ST3}, s{ST2}")
        e(f"v_lshlrev_b32 v{VT+10}, 7, v0")
        e(f"v_min_u32 v{VT+10}, 5180, v{VT+10}")
        e(f"buffer_load_dword v{VT+11}, v{VT+10}, s[{SR}:{SR+3}], s{ST3} offen")
        issued.append(("X", 0))
    nextB = [min(2, NB-1)]
    for k in range(1, max(NSLOT-2, nextB[0])):
        if k < NSLOT-2: issueW(k)
        if k < nextB[0]: issueB(k)
    for r in range(144): e(f"v_mov_b32 v{ACC+r}, 0")
    common.stamp(1)
    sync(-1)
    common.stamp(2)
    NF = NCH*FPC
    D = 5
    for g in range(D): reads(g)
    for g in range(NF):
        cch = g//FPC; w = g % FPC; kq = w//9; nb = w % 9
        out = min(NF-1, g+D-1) - g
        e(f"s_waitcnt lgkmcnt({2*out})")
        b = BR + ((cch % NB)*KS + kq)*4
        mfma(ACC + 16*nb, AR + 4*(g % 6), b)
        if w == 0:
            tgt = min(cch + NB - 1, 2*cch + 3)
            while nextB[0] <= tgt:
                issueB(nextB[0]); nextB[0] += 1
        g2 = g + D
        if g2 < NF:
            if g2 % FPC == 0: sync(g2//FPC - 1)
            reads(g2)
    if REPEAT:
        e("s_waitcnt vmcnt(0) lgkmcnt(0)"); e("s_barrier"); e("s_sub_u32 s95, s95, 1"); e("s_cmp_lg_u32 s95, 0"); e(f"s_cbranch_scc1 Lrep_{mode}")
    e("s_nop 7"); e("s_nop 7")
    common.stamp(3)
    if F1:
        C1 = -2*0.7978845608028654*1.4426950408889634
        C2 = C1*0.044715
        import struct
        f2u = lambda x: struct.unpack("<I", struct.pack("<f", x))[0]
        e(f"s_mov_b32 s{ST}, {hex(f2u(C1))}")
        e(f"s_mov_b32 s{ST2}, {hex(f2u(C2))}")
        CK = AR + 32
        assert CK % 2 == 0 and AR % 2 == 0 and CK + 3 < VA
        e(f"v_mov_b32 v{CK}, s{ST2}"); e(f"v_mov_b32 v{CK+1}, s{ST}"); e(f"v_mov_b32 v{CK+2}, 1.0")
        t0 = AR
        for nb in range(9):
            a = ACC + 16*nb
            tm = t0 + (nb % 2)*16
            for r in range(0,8,2): e(f"v_pk_mul_f32 {vr(tm+r,2)}, {vr(a+r,2)}, {vr(a+r,2)}")
            for r in range(0,8,2): e(f"v_pk_fma_f32 {vr(tm+r,2)}, {vr(tm+r,2)}, {vr(CK,2)}, {vr(CK,2)} op_sel:[0,0,1] op_sel_hi:[1,0,1]")
            for r in range(0,8,2): e(f"v_pk_mul_f32 {vr(tm+r,2)}, {vr(tm+r,2)}, {vr(a+r,2)}")
            for r in range(8): e(f"v_exp_f32 v{tm+r}, v{tm+r}")
            for r in range(0,8,2): e(f"v_pk_mul_f32 {vr(a+r,2)}, {vr(a+r,2)}, {vr(a+8+r,2)}")
            for r in range(0,8,2): e(f"v_pk_add_f32 {vr(tm+r,2)}, {vr(tm+r,2)}, {vr(CK+2,2)} op_sel:[0,0] op_sel_hi:[1,0]")
            for r in range(8): e(f"v_rcp_f32 v{tm+r}, v{tm+r}")
            e("s_nop 0")
            for r in range(0,8,2): e(f"v_pk_mul_f32 {vr(a+r,2)}, {vr(a+r,2)}, {vr(tm+r,2)}")
            for r in range(4): e(f"v_cvt_pk_bf16_f32 v{tm+8+r}, v{a+2*r}, v{a+2*r+1}")
            e(f"s_add_u32 s{ST3}, s3, {nb*1024}")
            e(f"buffer_store_dwordx4 {vr(tm+8,4)}, v{VB}, s[16:19], s{ST3} offen nt")
    else:
        for nb in range(9):
            a = ACC + 16*nb
            tm = AR + (nb % 3)*8
            for r in range(8): e(f"v_cvt_pk_bf16_f32 v{tm+r}, v{a+2*r}, v{a+2*r+1}")
            e(f"s_add_u32 s{ST3}, s3, {nb*2048}")
            e(f"buffer_store_dwordx4 {vr(tm,4)}, v{VB}, s[16:19], s{ST3} offen nt")
            e(f"buffer_store_dwordx4 {vr(tm+4,4)}, v{VB}, s[16:19], s{ST3} offen offset:1024 nt")
    e("s_waitcnt vmcnt(0)")
    common.stamp(4); common.stamp(6, True)
    common.stamp_out(7, SW, 8, 0 if True else VT)
    e("s_waitcnt vmcnt(0)")
    e("s_endpgm")
    lds = NSLOT*STR
    return VT+12, lds
```

```python
from common import *
import common
import struct
def f2u(x): return hex(struct.unpack("<I", struct.pack("<f", x))[0])
NA, NB_, NC = 192, 52, 12
NCU = 116
def prep_kernel():
    SW=20; ST=21; ST2=22; ST3=23; ST4=24; ST5=25
    e(f"s_cmp_ge_u32 s2, {NA+NB_+NC}")
    e("s_cbranch_scc1 Lprep_end")
    common.stamp(0); common.stamp(5, True)
    e(f"s_load_dwordx2 s[4:5], s[0:1], {A_X}")
    e(f"s_load_dwordx4 s[8:11], s[0:1], {A_WR}")
    e(f"s_load_dwordx2 s[6:7], s[0:1], {K_WS}")
    e("v_lshrrev_b32 v1, 6, v0")
    e("v_and_b32 v0, 63, v0")
    e("s_nop 0")
    e(f"v_readfirstlane_b32 s{SW}, v1")
    e("v_lshrrev_b32 v2, 5, v0")
    e("v_and_b32 v3, 31, v0")
    e("s_mov_b32 s43, s2")
    e(f"s_cmp_ge_u32 s2, {NA+NB_}")
    e("s_cbranch_scc1 Lprep_C")
    e(f"s_cmp_ge_u32 s2, {NA}")
    e("s_cbranch_scc1 Lprep_B")
    XF=8; XU=32; FF=80; ACC=224; T0=240
    e(f"s_mul_i32 s{ST}, s2, 43691")
    e(f"s_lshr_b32 s{ST}, s{ST}, 17")
    e(f"s_mul_i32 s{ST2}, s{ST}, 3")
    e(f"s_sub_u32 s{ST2}, s2, s{ST2}")
    e(f"s_mul_i32 s{ST3}, s{ST2}, 6")
    e(f"s_add_u32 s{ST3}, s{ST3}, s{SW}")
    e("v_lshlrev_b32 v4, 6, v3")
    e(f"v_add_u32 v4, s{ST}, v4")
    e("v_mul_u32_u24 v4, 1152, v4")
    e("v_mul_u32_u24 v5, 576, v2")
    e("v_add_u32 v4, v4, v5")
    e(f"s_mul_i32 s{ST4}, s{SW}, 96")
    e("s_waitcnt lgkmcnt(0)")
    srd(12, 4, 0, 2048*1152)
    for i in range(6):
        e(f"buffer_load_dwordx4 {vr(XF+4*i,4)}, v4, s[12:15], s{ST4} offen offset:{16*i}")
    e("v_and_b32 v5, 15, v0")
    e(f"s_lshl_b32 s{ST4}, s{ST3}, 4")
    e(f"v_add_u32 v5, s{ST4}, v5")
    e("v_bfe_u32 v6, v0, 4, 1")
    e("v_cvt_f32_u32 v7, v6")
    e("v_mul_f32 v7, 0.25, v7") if False else None
    e(f"v_mul_f32 v7, {f2u(0.25)}, v7")
    e("v_cmp_eq_u32 vcc, 0, v5")
    e("v_cmp_eq_u32 s[26:27], 1, v6")
    e("s_nop 1")
    e("s_and_b64 vcc, vcc, s[26:27]")
    e("v_mov_b32 v6, 288")
    e("s_nop 1")
    e("v_cndmask_b32 v5, v5, v6, vcc")
    e("v_cndmask_b32 v7, v7, 0, vcc") if False else None
    e("v_mov_b32 v6, 0")
    e("v_cndmask_b32 v7, v7, v6, vcc")
    e(f"s_mov_b32 s{ST4}, {f2u(1.0/576)}")
    e("v_cvt_f32_u32 v6, v5")
    e(f"v_mul_f32 v6, s{ST4}, v6")
    e("v_cos_f32 v6, v6")
    e("s_nop 0")
    e("v_add_f32 v6, v6, v6")
    e("v_mul_u32_u24 v1, 288, v2")
    R = T0
    for m in range(9):
        for z in range(2):
            e(f"v_add_u32 v{R+z}, {32*m+z}, v1")
            e(f"v_mul_u32_u24 v{R+z}, v{R+z}, v5")
            e(f"v_cvt_f32_u32 v{R+z}, v{R+z}")
            e(f"v_mul_f32 v{R+z}, s{ST4}, v{R+z}")
            e(f"v_fract_f32 v{R+z}, v{R+z}")
            e(f"v_add_f32 v{R+z}, v{R+z}, v7")
            e(f"v_cos_f32 v{R+z}, v{R+z}")
        e("s_nop 0")
        for p in range(16):
            a, b = R + (2*p) % 4, R + (2*p+1) % 4
            if p > 0:
                pa, pb = R + (2*p-2) % 4, R + (2*p-1) % 4
                e(f"v_fma_f32 v{a}, v6, v{pb}, -v{pa}")
                e(f"v_fma_f32 v{b}, v6, v{a}, -v{pb}")
            e(f"v_cvt_pk_bf16_f32 v{FF+16*m+p}, v{a}, v{b}")
    common.stamp(1)
    e("s_waitcnt vmcnt(0)")
    common.stamp(2)
    def reduce_(src_sq, ldsoff, dst):
        if src_sq:
            e(f"v_mul_f32 v{dst}, v{XF}, v{XF}") if False else None
        pass
    e(f"v_mul_u32_u24 v1, 48, v3")
    e(f"v_lshlrev_b32 v4, 2, v2")
    e(f"s_lshl_b32 s{ST4}, s{SW}, 3")
    e(f"v_add3_u32 v4, v1, v4, s{ST4}")
    e(f"v_mov_b32 v{T0+8}, 0x3f803f80")
    for i in range(24): e(f"v_dot2_f32_bf16 v{T0+i%4}, v{XF+i}, v{T0+8}, " + ("0" if i < 4 else f"v{T0+i%4}"))
    e(f"v_add_f32 v{T0}, v{T0}, v{T0+1}"); e(f"v_add_f32 v{T0+2}, v{T0+2}, v{T0+3}"); e(f"v_add_f32 v{T0}, v{T0}, v{T0+2}")
    e(f"ds_write_b32 v4, v{T0}")
    for i in range(24):
        e(f"v_lshlrev_b32 v{XU+2*i}, 16, v{XF+i}")
        e(f"v_and_b32 v{XU+2*i+1}, 0xffff0000, v{XF+i}")
    e("s_waitcnt lgkmcnt(0)"); e("s_barrier")
    def rd12(off, dst):
        for q in range(3): e(f"ds_read_b128 {vr(XF+4*q,4)}, v1 offset:{off+16*q}")
        e("s_waitcnt lgkmcnt(0)")
        for q in range(4): e(f"v_add_f32 v{XF+q}, v{XF+q}, v{XF+4+q}")
        for q in range(4): e(f"v_add_f32 v{XF+q}, v{XF+q}, v{XF+8+q}")
        e(f"v_add_f32 v{XF}, v{XF}, v{XF+1}"); e(f"v_add_f32 v{XF+2}, v{XF+2}, v{XF+3}"); e(f"v_add_f32 v{dst}, v{XF}, v{XF+2}")
        e(f"v_mul_f32 v{dst}, {f2u(1.0/576)}, v{dst}")
    rd12(0, T0+4)
    for q in range(4): e(f"v_mov_b32 v{T0+q}, 0")
    for i in range(24):
        t = T0+8+2*(i % 4); a = T0+2*(i % 2)
        e(f"v_pk_add_f32 {vr(t,2)}, {vr(XU+2*i,2)}, {vr(T0+4,2)} op_sel:[0,0] op_sel_hi:[1,0] neg_lo:[0,1] neg_hi:[0,1]")
        if i >= 1:
            t1 = T0+8+2*((i-1) % 4); a1 = T0+2*((i-1) % 2)
            e(f"v_pk_fma_f32 {vr(a1,2)}, {vr(t1,2)}, {vr(t1,2)}, {vr(a1,2)}")
    t1 = T0+8+2*(23 % 4); a1 = T0+2*(23 % 2)
    e(f"v_pk_fma_f32 {vr(a1,2)}, {vr(t1,2)}, {vr(t1,2)}, {vr(a1,2)}")
    e(f"v_add_f32 v{T0}, v{T0}, v{T0+1}"); e(f"v_add_f32 v{T0+2}, v{T0+2}, v{T0+3}"); e(f"v_add_f32 v{T0}, v{T0}, v{T0+2}")
    e(f"ds_write_b32 v4, v{T0} offset:2048")
    e("s_waitcnt lgkmcnt(0)"); e("s_barrier")
    rd12(2048, T0+5)
    e(f"v_cvt_pk_bf16_f32 v{T0+6}, v{T0+4}, v{T0+5}")
    e(f"v_lshlrev_b32 v{T0+4}, 16, v{T0+6}")
    e(f"v_and_b32 v{T0+5}, 0xffff0000, v{T0+6}")
    e(f"v_add_f32 v{T0+5}, {f2u(1e-5)}, v{T0+5}")
    e(f"v_cvt_pk_bf16_f32 v{T0+5}, v{T0+5}, v{T0+5}")
    e(f"v_lshlrev_b32 v{T0+5}, 16, v{T0+5}")
    e(f"v_sqrt_f32 v{T0+5}, v{T0+5}")
    e("s_nop 0")
    e(f"v_cvt_pk_bf16_f32 v{T0+5}, v{T0+5}, v{T0+5}")
    e(f"v_lshlrev_b32 v{T0+5}, 16, v{T0+5}")
    e(f"v_rcp_f32 v{T0+6}, v{T0+5}")
    e("s_nop 0")
    for i in range(24):
        a, b = XU+2*i, XU+2*i+1
        e(f"v_pk_add_f32 {vr(a,2)}, {vr(a,2)}, {vr(T0+4,2)} op_sel:[0,0] op_sel_hi:[1,0] neg_lo:[0,1] neg_hi:[0,1]")
        e(f"v_cvt_pk_bf16_f32 v{b}, v{a}, v{b}")
        e(f"v_lshlrev_b32 v{a}, 16, v{b}"); e(f"v_and_b32 v{b}, 0xffff0000, v{b}")
        e(f"v_pk_mul_f32 {vr(a,2)}, {vr(a,2)}, {vr(T0+6,2)} op_sel:[0,0] op_sel_hi:[1,0]")
        e(f"v_cvt_pk_bf16_f32 v{XF+i}, v{a}, v{b}")
    e("v_lshlrev_b32 v4, 4, v0")
    e(f"s_mul_i32 s{ST4}, s{SW}, {6*1024}")
    e(f"s_add_u32 s{ST5}, s{ST4}, 4096")
    e(f"v_add_u32 v1, s{ST5}, v4")
    for i in range(6): e(f"ds_write_b128 v1, {vr(XF+4*i,4)} offset:{1024*i}")
    e(f"s_cmp_lg_u32 s{ST2}, 0")
    e("s_cbranch_scc1 Lprep_A2")
    srd(12, 6, OFF['XN'], SZ['XN'])
    e(f"s_mul_i32 s{ST5}, s{ST}, {36*1024}")
    e(f"s_add_u32 s{ST5}, s{ST5}, s{ST4}")
    for i in range(6):
        e(f"s_add_u32 s{ST4}, s{ST5}, {1024*i}")
        e(f"buffer_store_dwordx4 {vr(XF+4*i,4)}, v4, s[12:15], s{ST4} offen nt")
    lab("Lprep_A2")
    for r in range(16): e(f"v_mov_b32 v{ACC+r}, 0")
    e("s_waitcnt lgkmcnt(0)"); e("s_barrier")
    common.stamp(3)
    e("v_add_u32 v1, 4096, v4")
    for ks in range(12): e(f"ds_read_b128 {vr(XU+4*ks,4)}, v1 offset:{1024*ks}")
    for ks in range(36):
        out = min(35, max(11, ks+10)) - ks
        e(f"s_waitcnt lgkmcnt({min(out,15)})")
        mfma(ACC, XU+4*(ks % 12), FF+4*ks)
        if ks >= 1 and ks + 11 < 36:
            k2 = ks + 11
            e(f"ds_read_b128 {vr(XU+4*(k2 % 12),4)}, v1 offset:{1024*k2}")
    e("s_nop 7"); e("s_nop 7")
    for r in range(8): e(f"v_cvt_pk_bf16_f32 v{XF+r}, v{ACC+2*r}, v{ACC+2*r+1}")
    srd(12, 6, OFF['PT'], SZ['PT'])
    e("v_and_b32 v5, 15, v0")
    e(f"s_lshl_b32 s{ST4}, s{ST3}, 4")
    e(f"v_add_u32 v5, s{ST4}, v5")
    e("v_bfe_u32 v6, v0, 4, 1")
    e("v_lshl_add_u32 v5, v5, 1, v6")
    e("v_lshlrev_b32 v5, 12, v5")
    e("v_lshl_add_u32 v5, v2, 3, v5")
    e(f"s_lshl_b32 s{ST4}, s{ST}, 6")
    for q in range(4):
        e(f"buffer_store_dwordx2 {vr(XF+2*q,2)}, v5, s[12:15], s{ST4} offen offset:{16*q}")
    e("s_waitcnt vmcnt(0)")
    common.stamp(4); common.stamp(6, True); common.stamp_out(7, SW, 6, 0); e("s_waitcnt vmcnt(0)")
    e("s_endpgm")
    lab("Lprep_B")
    e(f"s_sub_u32 s{ST}, s2, {NA}")
    e(f"s_mul_i32 s{ST}, s{ST}, 6")
    e(f"s_add_u32 s40, s{ST}, s{SW}")
    e("s_add_u32 s41, s40, 312")
    e("s_waitcnt lgkmcnt(0)")
    srd(12, 8, 0, 2048*578); srd(16, 10, 0, 2048*578); srd(28, 6, OFF['WT'], SZ['WT'])
    e("v_lshlrev_b32 v4, 1, v0")
    e("v_cmp_lt_u32 vcc, 32, v0")
    e("v_mov_b32 v7, 0x40000000")
    e("v_mov_b32 v6, 0")
    e("v_cndmask_b32 v6, v6, v7, vcc")
    e("v_add_u32 v6, v6, v4")
    for j in range(2):
        LO = 8 + 40*j; HI = LO + 20
        if j == 1:
            e("s_cmp_ge_u32 s41, 512"); e("s_cbranch_scc1 Lprep_B2")
        e(f"s_and_b32 s{ST2}, s{40+j}, 31")
        e(f"s_lshr_b32 s{ST3}, s{40+j}, 5")
        e(f"s_lshl_b32 s{ST4}, s{ST3}, 7")
        e(f"s_add_u32 s{ST4}, s{ST4}, s{ST2}")
        e(f"s_mul_i32 s{ST4}, s{ST4}, 578")
        for i in range(4):
            if i: e(f"s_add_u32 s{ST4}, s{ST4}, {32*578}")
            for cg in range(5):
                va = "v6" if cg == 4 else "v4"
                e(f"buffer_load_ushort v{LO+cg*4+i}, {va}, s[12:15], s{ST4} offen offset:{128*cg}")
                e(f"buffer_load_ushort v{HI+cg*4+i}, {va}, s[16:19], s{ST4} offen offset:{128*cg}")
    lab("Lprep_B2")
    for j in range(2):
        LO = 8 + 40*j; HI = LO + 20
        if j == 1:
            e("s_cmp_ge_u32 s41, 512"); e("s_cbranch_scc1 Lprep_Bend")
        e(f"s_and_b32 s{ST2}, s{40+j}, 31")
        e(f"s_lshr_b32 s{ST3}, s{40+j}, 5")
        e(f"s_lshr_b32 s{ST4}, s{ST3}, 1")
        e(f"s_lshl_b32 s{ST4}, s{ST4}, 10")
        e(f"s_and_b32 s{ST5}, s{ST3}, 1")
        e(f"s_lshl_b32 s{ST5}, s{ST5}, 5")
        e(f"s_add_u32 s{ST5}, s{ST5}, s{ST2}")
        e(f"s_lshl_b32 s{ST5}, s{ST5}, 4")
        e(f"s_add_u32 s{ST4}, s{ST4}, s{ST5}")
        e("v_lshlrev_b32 v5, 13, v0")
        e(f"s_waitcnt vmcnt(0)")
        for cg in range(5):
            for i in range(4): e(f"v_lshl_or_b32 v{LO+cg*4+i}, v{HI+cg*4+i}, 16, v{LO+cg*4+i}")
            e(f"buffer_store_dwordx4 {vr(LO+cg*4,4)}, v5, s[28:31], s{ST4} offen")
            if cg < 4: e(f"v_add_u32 v5, {64*8192}, v5")
    lab("Lprep_Bend")
    common.stamp(4); common.stamp(6, True); common.stamp_out(7, SW, 6, 0)
    e("s_endpgm")
    lab("Lprep_C")
    e(f"s_sub_u32 s{ST}, s2, {NA+NB_}")
    e(f"s_mul_i32 s{ST}, s{ST}, 6")
    e(f"s_add_u32 s{ST}, s{ST}, s{SW}")
    e(f"s_cmp_ge_u32 s{ST}, 692")
    e("s_cbranch_scc1 Lprep_Cnext")
    e("s_waitcnt lgkmcnt(0)")
    e("v_lshlrev_b32 v4, 4, v0")
    e(f"s_cmp_ge_u32 s{ST}, 648")
    e("s_cbranch_scc1 Lprep_D")
    srd(12, 6, OFF['FINV'], SZ['FINV'])
    e(f"s_mul_i32 s{ST2}, s{ST}, 1821")
    e(f"s_lshr_b32 s{ST2}, s{ST2}, 16")
    e(f"s_mul_i32 s{ST3}, s{ST2}, 36")
    e(f"s_sub_u32 s{ST3}, s{ST}, s{ST3}")
    e(f"s_lshl_b32 s{ST2}, s{ST2}, 5")
    e(f"v_add_u32 v5, s{ST2}, v3")
    e(f"s_lshl_b32 s{ST3}, s{ST3}, 3")
    e(f"v_lshl_add_u32 v6, v2, 2, s{ST3}")
    e(f"s_mov_b32 s{ST4}, {f2u(1.0/576)}")
    e(f"v_mov_b32 v7, {f2u(2.0/576)}")
    e(f"v_mov_b32 v18, {f2u(1.0/576)}")
    e("v_cmp_eq_u32 vcc, 0, v6")
    e("s_nop 1")
    e("v_cndmask_b32 v18, v7, v18, vcc")
    e("v_mov_b32 v19, 288")
    e("v_cndmask_b32 v19, v6, v19, vcc")
    e(f"v_mov_b32 v20, {f2u(0.25)}")
    e("v_mov_b32 v21, 0")
    e("v_cndmask_b32 v20, v20, v21, vcc")
    for j in range(8):
        t = 8+j
        if j == 1: e(f"v_mul_u32_u24 v{t}, v19, v5")
        else:
            e(f"v_add_u32 v{t}, {j>>1}, v6")
            e(f"v_mul_u32_u24 v{t}, v{t}, v5")
        e(f"v_cvt_f32_u32 v{t}, v{t}")
        e(f"v_mul_f32 v{t}, s{ST4}, v{t}")
        e(f"v_fract_f32 v{t}, v{t}")
        if j == 1: e(f"v_add_f32 v{t}, v20, v{t}")
        elif j & 1: e(f"v_add_f32 v{t}, {f2u(0.25)}, v{t}")
        e(f"v_cos_f32 v{t}, v{t}")
        e("s_nop 0")
        e(f"v_mul_f32 v{t}, v{18 if j < 2 else 7}, v{t}")
    for p in range(4): e(f"v_cvt_pk_bf16_f32 v{24+p}, v{8+2*p}, v{9+2*p}")
    e(f"s_lshl_b32 s{ST}, s{ST}, 10")
    e(f"buffer_store_dwordx4 v[24:27], v4, s[12:15], s{ST} offen")
    e("s_branch Lprep_Cnext")
    lab("Lprep_D")
    srd(12, 6, OFF['DT'], SZ['DT'])
    e(f"s_sub_u32 s{ST}, s{ST}, 648")
    e(f"s_cmp_ge_u32 s{ST}, 28")
    e("s_cbranch_scc1 Lprep_TW")
    e(f"s_cmp_ge_u32 s{ST}, 12")
    e("s_cbranch_scc1 Lprep_D64")
    e(f"s_mov_b32 s{ST2}, 0")
    e(f"s_and_b32 s{ST3}, s{ST}, 1"); e(f"s_lshl_b32 s{ST3}, s{ST3}, 4")
    e(f"s_mov_b32 s{ST4}, {f2u(1/32)}")
    e(f"s_lshr_b32 s28, s{ST}, 1")
    e(f"s_mov_b32 s{ST5}, 0")
    e("s_cmp_eq_u32 s28, 1"); e(f"s_cselect_b32 s{ST5}, {f2u(0.75)}, s{ST5}")
    e("s_cmp_eq_u32 s28, 2"); e(f"s_cselect_b32 s{ST5}, {f2u(0.25)}, s{ST5}")
    e("s_cmp_eq_u32 s28, 4"); e(f"s_cselect_b32 s{ST5}, {f2u(0.75)}, s{ST5}")
    e("s_cmp_ge_u32 s28, 3")
    e(f"s_cselect_b32 s26, {f2u(1/2048)}, 1.0")
    e("s_cselect_b32 s27, 1, 0")
    e("s_branch Lprep_Dgo")
    lab("Lprep_D64")
    e(f"s_sub_u32 s28, s{ST}, 12")
    e(f"s_bfe_u32 s{ST2}, s28, {(1<<16)|2}"); e(f"s_lshl_b32 s{ST2}, s{ST2}, 5")
    e(f"s_and_b32 s{ST3}, s28, 3"); e(f"s_lshl_b32 s{ST3}, s{ST3}, 4")
    e(f"s_mov_b32 s{ST4}, {f2u(1/64)}")
    e("s_cmp_ge_u32 s28, 8"); e(f"s_cselect_b32 s{ST5}, {f2u(0.75)}, 0")
    e("s_mov_b32 s26, 1.0"); e("s_mov_b32 s27, 1")
    lab("Lprep_Dgo")
    e(f"v_add_u32 v5, s{ST2}, v3")
    e("s_cmp_eq_u32 s27, 1")
    e("s_cselect_b32 s29, 2, 3")
    e("s_cselect_b32 s30, 4, 0")
    e("v_lshlrev_b32 v6, s29, v2")
    e(f"v_add_u32 v6, s{ST3}, v6")
    for j in range(8):
        t = 8+j
        e(f"v_add_u32 v{t}, {j}, v6")
        if j >= 4: e(f"v_add_u32 v{t}, s30, v{t}")
        e(f"v_mul_u32_u24 v{t}, v{t}, v5")
        e(f"v_cvt_f32_u32 v{t}, v{t}")
        e(f"v_mul_f32 v{t}, s{ST4}, v{t}")
        e(f"v_fract_f32 v{t}, v{t}")
        e(f"v_add_f32 v{t}, s{ST5}, v{t}")
        e(f"v_cos_f32 v{t}, v{t}")
        e("s_nop 0")
        e(f"v_mul_f32 v{t}, s26, v{t}")
    for p in range(4): e(f"v_cvt_pk_bf16_f32 v{24+p}, v{8+2*p}, v{9+2*p}")
    e(f"s_lshl_b32 s{ST}, s{ST}, 10")
    e(f"buffer_store_dwordx4 v[24:27], v4, s[12:15], s{ST} offen")
    e("s_branch Lprep_Cnext")
    lab("Lprep_TW")
    e(f"s_sub_u32 s28, s{ST}, 28")
    e("s_and_b32 s29, s28, 3"); e("s_lshl_b32 s29, s29, 3")
    e(f"s_bfe_u32 s30, s28, {(1<<16)|2}"); e("s_lshl_b32 s30, s30, 5")
    e("s_cmp_ge_u32 s28, 8")
    e("s_cselect_b32 s31, 0, s30"); e("s_cselect_b32 s30, s30, 0")
    e("s_add_u32 s29, s29, s31")
    e("v_lshl_add_u32 v6, v2, 2, s29")
    e("v_add_u32 v5, s30, v3")
    for i in range(4):
        t = 8+2*i
        e(f"v_add_u32 v{t}, {i}, v6"); e(f"v_mul_u32_u24 v{t}, v{t}, v5"); e(f"v_cvt_f32_u32 v{t}, v{t}")
        e(f"v_mul_f32 v{t}, {f2u(1/2048)}, v{t}")
        e(f"v_sin_f32 v{t+1}, v{t}"); e(f"v_cos_f32 v{t}, v{t}"); e("s_nop 0")
        e(f"v_cvt_pk_bf16_f32 v{24+i}, v{t}, v{t+1}")
    e(f"s_lshl_b32 s{ST}, s{ST}, 10")
    e(f"buffer_store_dwordx4 v[24:27], v4, s[12:15], s{ST} offen")
    lab("Lprep_Cnext")
    e(f"s_add_u32 s2, s2, {NC}")
    e(f"s_cmp_lt_u32 s2, {NA+NB_+NCU}")
    e("s_cbranch_scc1 Lprep_C")
    if common.STAMP:
        e("s_mov_b32 s2, s43"); common.stamp(4); common.stamp(6, True); common.stamp_out(7, SW, 6, 0)
    lab("Lprep_end")
    e("s_endpgm")
    return 256, 4096+36*1024, NA+NB_+NC
```

```python
from common import *
import common
import math
REPEAT = 0
NO_DMA = 0
NO_LDS = 0
NO_BAR = 0
NO_W = 0
NO_B = 0
def gemm_kernel(mode, NW, BK, NSLOT, NB, PF=0):
    F1 = mode == "ffn1"
    KS = BK//16
    NCH = 576//BK
    FPC = 9*KS
    if F1:
        REG = BK*288
        STR = (2*REG + 128 + 255)//256*256
        NDMA = 2*REG//1024
        upr = 18
    else:
        REG = BK*576
        STR = REG
        NDMA = REG//1024
        upr = 36
    T = (NDMA + NW - 1)//NW
    GS = (0 if NO_W else T) + (0 if NO_B else KS)
    ACC = 0; AR = 144; BR = AR + 24; VA = BR + NB*KS*4
    VO = VA + NSLOT
    VB = VO + T
    VT = VB + 1
    SR = 20
    SM = SR + 4*T
    SW = SM + T
    SO = SW + 1
    SB = SW + 2
    ST = SW + 3; ST2 = SW + 4; ST3 = SW+5
    assert ST3 < 66, ST3
    common.stamp(0); common.stamp(5, True)
    e(f"s_load_dwordx2 s[4:5], s[0:1], {B_WG if F1 else B_WD}")
    if F1: e(f"s_load_dwordx2 s[6:7], s[0:1], {B_WU}")
    e(f"s_load_dwordx2 s[8:9], s[0:1], {K_WS}")
    e(f"v_lshrrev_b32 v{VT}, 6, v0")
    e(f"v_and_b32 v0, 63, v0")
    e("s_nop 0")
    e(f"v_readfirstlane_b32 s{SW}, v{VT}")
    e(f"s_and_b32 s{ST}, s2, 7")
    e(f"s_lshr_b32 s{ST2}, s2, 3")
    if F1:
        e(f"s_lshr_b32 s{ST3}, s{ST2}, 3")
        e(f"s_lshl_b32 s{ST}, s{ST}, 2")
        e(f"s_add_u32 s{ST}, s{ST}, s{ST3}")
        e(f"s_and_b32 s{ST2}, s{ST2}, 7")
        e(f"s_lshl_b32 s{ST2}, s{ST2}, 3")
        e(f"s_add_u32 s{ST2}, s{ST2}, s{SW}")
        e(f"s_mul_i32 s{SO}, s{ST}, 288")
        e(f"s_mul_i32 s{SB}, s{ST2}, {36*1024}")
        e(f"s_mul_i32 s{ST3}, s{ST2}, 288")
        e(f"s_mul_i32 s{ST}, s{ST}, 9")
        e(f"s_add_u32 s{ST3}, s{ST3}, s{ST}")
        e(f"s_lshl_b32 s3, s{ST3}, 10")
    else:
        e(f"s_and_b32 s{ST3}, s{ST2}, 1")
        e(f"s_lshr_b32 s{ST2}, s{ST2}, 1")
        e(f"s_lshl_b32 s{ST2}, s{ST2}, 2")
        e(f"s_add_u32 s{ST2}, s{ST2}, s{SW}")
        e(f"s_mul_i32 s{SO}, s{ST}, {576*1152}")
        e(f"s_mul_i32 s3, s{ST3}, 576")
        e(f"s_add_u32 s{SO}, s{SO}, s3")
        e(f"s_mul_i32 s{SB}, s{ST2}, 288")
        e(f"s_mul_i32 s3, s{ST}, 36")
        e(f"s_add_u32 s{SB}, s{SB}, s3")
        e(f"s_lshl_b32 s{SB}, s{SB}, 10")
        e(f"s_lshl_b32 s3, s{ST}, 6")
        e(f"s_add_u32 s3, s3, s{ST2}")
        e(f"s_mul_i32 s3, s3, 18")
        e(f"s_mul_i32 s{ST3}, s{ST3}, 9")
        e(f"s_add_u32 s3, s3, s{ST3}")
        e(f"s_lshl_b32 s3, s3, 11")
    for t in range(T):
        e(f"s_add_u32 s{ST}, s{SW}, {NW*t}")
        if F1:
            half = NDMA//2
            e(f"s_cmp_ge_u32 s{ST}, {half}")
            e(f"s_cselect_b32 s{ST2}, {half}, 0")
            e(f"s_cselect_b32 s{ST3}, {REG+128}, 0")
            e(f"s_sub_u32 s{ST2}, s{ST}, s{ST2}")
        else:
            e(f"s_mov_b32 s{ST2}, s{ST}")
            e(f"s_mov_b32 s{ST3}, 0")
        e(f"s_lshl_b32 s{SM+t}, s{ST2}, 10")
        e(f"s_add_u32 s{SM+t}, s{SM+t}, s{ST3}")
        e(f"s_lshl_b32 s{ST2}, s{ST2}, 6")
        e(f"v_add_u32 v{VT}, s{ST2}, v0")
        divmagic(VT+1, VT, upr, ST2, maxv=4096)
        e(f"v_mul_u32_u24 v{VT+2}, {upr}, v{VT+1}")
        e(f"v_sub_u32 v{VT}, v{VT}, v{VT+2}")
        e(f"v_lshlrev_b32 v{VT}, 4, v{VT}")
        if F1:
            hb = BK//2
            e(f"v_lshrrev_b32 v{VT+2}, {int(math.log2(hb))}, v{VT+1}")
            e(f"v_and_b32 v{VT+1}, {hb-1}, v{VT+1}")
            e(f"v_mul_u32_u24 v{VT+2}, 288, v{VT+2}")
            e(f"v_add_u32 v{VT+1}, v{VT+1}, v{VT+2}")
            e(f"s_mov_b32 s{ST2}, 9216")
            e(f"v_mul_lo_u32 v{VT+1}, s{ST2}, v{VT+1}")
        else:
            e(f"v_mul_u32_u24 v{VT+1}, 1152, v{VT+1}")
        e(f"v_add_u32 v{VO+t}, v{VT}, v{VT+1}")
        if NW*t + NW - 1 >= NDMA:
            e(f"s_cmp_ge_u32 s{ST}, {NDMA}")
            e(f"s_cselect_b32 s{ST2}, 0x40000000, 0")
            assert (2*NSLOT-1)*STR + 1024 < 262144
            e(f"s_cselect_b32 s{SM+t}, {NSLOT*STR}, s{SM+t}")
            e(f"v_add_u32 v{VO+t}, s{ST2}, v{VO+t}")
    e(f"v_lshlrev_b32 v{VB}, 4, v0")
    e(f"v_lshrrev_b32 v{VT}, 5, v0")
    e(f"v_bfe_u32 v{VT+1}, v0, 4, 1")
    e(f"v_bfe_u32 v{VT+2}, v0, 2, 2")
    e(f"v_and_b32 v{VT+3}, 3, v0")
    e(f"v_lshlrev_b32 v{VT+3}, 3, v{VT+3}")
    if F1:
        e(f"v_mul_u32_u24 v{VT}, {BK//2}, v{VT}")
        e(f"v_add_u32 v{VT}, v{VT}, v{VT+2}")
        e(f"v_mul_u32_u24 v{VT}, 288, v{VT}")
        e(f"v_mul_u32_u24 v{VT+1}, {REG+128}, v{VT+1}")
    else:
        e(f"v_lshlrev_b32 v{VT}, 2, v{VT}")
        e(f"v_add_u32 v{VT}, v{VT}, v{VT+2}")
        e(f"v_mul_u32_u24 v{VT}, 576, v{VT}")
        e(f"v_lshlrev_b32 v{VT+1}, 5, v{VT+1}")
    e(f"v_add3_u32 v{VA}, v{VT}, v{VT+1}, v{VT+3}")
    for s in range(1, NSLOT):
        e(f"v_add_u32 v{VA+s}, {s*STR}, v{VA}")
    e("s_waitcnt lgkmcnt(0)")
    wsz = 576*9216 if F1 else 4608*1152
    for t in range(T):
        d = SR + 4*t
        if F1:
            e(f"s_add_u32 s{ST}, s{SW}, {NW*t}")
            e(f"s_cmp_ge_u32 s{ST}, {NDMA//2}")
            e(f"s_cselect_b32 s{d}, s6, s4")
            e(f"s_cselect_b32 s{d+1}, s7, s5")
        else:
            e(f"s_mov_b32 s{d}, s4"); e(f"s_mov_b32 s{d+1}, s5")
        e(f"s_mov_b32 s{d+2}, {wsz}"); e(f"s_mov_b32 s{d+3}, 0x00020000")
    srd(12, 8, OFF['XN' if F1 else 'H'], SZ['XN' if F1 else 'H'])
    srd(16, 8, OFF['H' if F1 else 'PART'], SZ['H' if F1 else 'PART'])
    rowb = 9216 if F1 else 1152
    chrows = BK//2 if F1 else BK
    issued = []
    def issueW(k):
        if NO_DMA or NO_W or k >= NCH: return
        e(f"s_add_u32 s{ST}, s{SO}, {k*chrows*rowb}")
        for t in range(T):
            e(f"s_add_u32 m0, s{SM+t}, {(k%NSLOT)*STR}")
            if t == 0: e("s_nop 0")
            else: e(f"s_nop 0")
            e(f"buffer_load_dwordx4 v{VO+t}, s[{SR+4*t}:{SR+4*t+3}], s{ST} offen lds")
            issued.append(("W", k))
    def issueB(k):
        if NO_DMA or NO_B or k >= NCH: return
        e(f"s_add_u32 s{ST2}, s{SB}, {k*KS*1024}")
        for q in range(KS):
            e(f"buffer_load_dwordx4 {vr(BR+((k%NB)*KS+q)*4,4)}, v{VB}, s[12:15], s{ST2} offen offset:{q*1024}")
            issued.append(("B", k))
    def reads(g):
        if NO_LDS: return
        cch = g//FPC; w = g % FPC; kq = w//9; nb = w % 9
        a = AR + 4*(g % 6)
        if F1:
            o1 = (8*kq)*288 + nb*32; o2 = o1 + 4*288
        else:
            o1 = (16*kq)*576 + nb*64; o2 = o1 + 8*576
        e(f"ds_read_b64_tr_b16 {vr(a,2)}, v{VA+cch%NSLOT} offset:{o1}")
        e(f"ds_read_b64_tr_b16 {vr(a+2,2)}, v{VA+cch%NSLOT} offset:{o2}")
    def sync(cc):
        need = [i for i, x in enumerate(issued) if x[1] <= cc+1 and x[0] != "X"]
        allowed = len(issued) - 1 - max(need) if need else len(issued)
        e(f"s_waitcnt vmcnt({min(allowed, 63)})")
        if not NO_BAR: e("s_barrier")
        issueW(cc + NSLOT - 1)
    if REPEAT:
        e(f's_mov_b32 s95, {REPEAT}'); lab(f'Lrep_{mode}')
    issueW(0); issueB(0)
    if PF:
        e(f"s_lshr_b32 s{ST3}, s2, 3"); e(f"s_mul_i32 s{ST3}, s{ST3}, {18*1152}")
        e(f"s_and_b32 s{ST2}, s2, 7"); e(f"s_mul_i32 s{ST2}, s{ST2}, {576*1152}"); e(f"s_add_u32 s{ST3}, s{ST3}, s{ST2}")
        e(f"s_mul_i32 s{ST2}, s{SW}, {5184}"); e(f"s_add_u32 s{ST3}, s{ST3}, s{ST2}")
        e(f"v_lshlrev_b32 v{VT+10}, 7, v0")
        e(f"v_min_u32 v{VT+10}, 5180, v{VT+10}")
        e(f"buffer_load_dword v{VT+11}, v{VT+10}, s[{SR}:{SR+3}], s{ST3} offen")
        issued.append(("X", 0))
    nextB = [min(2, NB-1)]
    for k in range(1, max(NSLOT-2, nextB[0])):
        if k < NSLOT-2: issueW(k)
        if k < nextB[0]: issueB(k)
    for r in range(144): e(f"v_mov_b32 v{ACC+r}, 0")
    common.stamp(1)
    sync(-1)
    common.stamp(2)
    NF = NCH*FPC
    D = 5
    for g in range(D): reads(g)
    for g in range(NF):
        cch = g//FPC; w = g % FPC; kq = w//9; nb = w % 9
        out = min(NF-1, g+D-1) - g
        e(f"s_waitcnt lgkmcnt({2*out})")
        b = BR + ((cch % NB)*KS + kq)*4
        mfma(ACC + 16*nb, AR + 4*(g % 6), b)
        if w == 0:
            tgt = min(cch + NB - 1, 2*cch + 3)
            while nextB[0] <= tgt:
                issueB(nextB[0]); nextB[0] += 1
        g2 = g + D
        if g2 < NF:
            if g2 % FPC == 0: sync(g2//FPC - 1)
            reads(g2)
    if REPEAT:
        e("s_waitcnt vmcnt(0) lgkmcnt(0)"); e("s_barrier"); e("s_sub_u32 s95, s95, 1"); e("s_cmp_lg_u32 s95, 0"); e(f"s_cbranch_scc1 Lrep_{mode}")
    e("s_nop 7"); e("s_nop 7")
    common.stamp(3)
    if F1:
        C1 = -2*0.7978845608028654*1.4426950408889634
        C2 = C1*0.044715
        import struct
        f2u = lambda x: struct.unpack("<I", struct.pack("<f", x))[0]
        e(f"s_mov_b32 s{ST}, {hex(f2u(C1))}")
        e(f"s_mov_b32 s{ST2}, {hex(f2u(C2))}")
        e(f"v_mov_b32 v{VT+8}, s{ST}")
        t0 = AR
        for nb in range(9):
            a = ACC + 16*nb
            tm = t0 + (nb % 2)*16
            for r in range(8): e(f"v_mul_f32 v{tm+r}, v{a+r}, v{a+r}")
            for r in range(8): e(f"v_fma_f32 v{tm+r}, v{tm+r}, s{ST2}, v{VT+8}")
            for r in range(8): e(f"v_mul_f32 v{tm+r}, v{tm+r}, v{a+r}")
            for r in range(8): e(f"v_exp_f32 v{tm+r}, v{tm+r}")
            for r in range(8): e(f"v_mul_f32 v{a+r}, v{a+r}, v{a+8+r}")
            for r in range(8): e(f"v_add_f32 v{tm+r}, 1.0, v{tm+r}")
            for r in range(8): e(f"v_rcp_f32 v{tm+r}, v{tm+r}")
            e("s_nop 0")
            for r in range(8): e(f"v_mul_f32 v{a+r}, v{a+r}, v{tm+r}")
            for r in range(4): e(f"v_cvt_pk_bf16_f32 v{tm+8+r}, v{a+2*r}, v{a+2*r+1}")
            e(f"s_add_u32 s{ST3}, s3, {nb*1024}")
            e(f"buffer_store_dwordx4 {vr(tm+8,4)}, v{VB}, s[16:19], s{ST3} offen nt")
    else:
        for nb in range(9):
            a = ACC + 16*nb
            tm = AR + (nb % 3)*8
            for r in range(8): e(f"v_cvt_pk_bf16_f32 v{tm+r}, v{a+2*r}, v{a+2*r+1}")
            e(f"s_add_u32 s{ST3}, s3, {nb*2048}")
            e(f"buffer_store_dwordx4 {vr(tm,4)}, v{VB}, s[16:19], s{ST3} offen nt")
            e(f"buffer_store_dwordx4 {vr(tm+4,4)}, v{VB}, s[16:19], s{ST3} offen offset:1024 nt")
    e("s_waitcnt vmcnt(0)")
    common.stamp(4); common.stamp(6, True)
    common.stamp_out(7, SW, 8, 0 if True else VT)
    e("s_waitcnt vmcnt(0)")
    e("s_endpgm")
    lds = NSLOT*STR
    return VT+12, lds
```
